```python
import torch

def _softmax(x, axis=-1):
    return torch.softmax(x, dim=axis)

def _gelu(x):
    return torch.nn.functional.gelu(x, approximate='tanh')

def _silu(x):
    return torch.nn.functional.silu(x)

def _sigmoid(x):
    return torch.sigmoid(x)

def _layernorm(x, axis=-1, eps=1e-05):
    m = x.mean(dim=axis, keepdim=True)
    v = x.var(dim=axis, keepdim=True, unbiased=False)
    return (x - m) / torch.sqrt(v + eps)

def _scatter_add(tgt, idx, src, axis=0):
    return tgt.clone().index_add_(axis, idx, src)

def _segment_sum(src, seg, n):
    out = torch.zeros((n,) + src.shape[1:], dtype=src.dtype)
    return out.index_add_(0, seg, src)

def _pad(x, pw):
    flat = tuple((v for pair in reversed(pw) for v in pair))
    return torch.nn.functional.pad(x, flat)
kernel_name = 'recurrent_scan__mha_block_cached__mixer_gmlp__prompt'

def setup_inputs():

    _w = lambda a: (lambda t: t.to(torch.bfloat16) if t.is_floating_point() else t)(torch.as_tensor(a))

    def _A_setup():
        B, Sq, D = (1, 2048, 640)
        H, Sk, Dh = (32, 2048, 128)
        return {'x': _w((lambda *s: torch.randn(*s, dtype=torch.bfloat16) * 0.05)(B, Sq, D)), 'k_cache': _w((lambda *s: torch.randn(*s, dtype=torch.bfloat16) * 0.8)(B, H, Sk, Dh)), 'v_cache': _w((lambda *s: torch.randn(*s, dtype=torch.bfloat16) * 0.2)(B, H, Sk, Dh)), 'wq': _w((lambda *s: torch.randn(*s, dtype=torch.bfloat16) * 0.8)(D, H * Dh) * D ** (-0.5)), 'wo': _w((lambda *s: torch.randn(*s, dtype=torch.bfloat16) * 0.2)(H * Dh, D) * (H * Dh) ** (-0.5))}
    _A_in = _A_setup()

    def _B_setup():
        B, S, D, F = (1, 2048, 640, 1728)
        Fh = F // 2
        return {'x': _w((lambda *s: torch.randn(*s, dtype=torch.bfloat16) * 0.05)(B, S, D)), 'w_in': _w((lambda *s: torch.randn(*s, dtype=torch.bfloat16) * 0.4)(D, 2 * Fh)), 'w_sp': _w(0.01 * (lambda *s: torch.randn(*s, dtype=torch.bfloat16) * 0.4)(S, S)), 'b_sp': _w(1.0 + 0.01 * (lambda *s: torch.randn(*s, dtype=torch.bfloat16) * 0.1)(S)), 'w_out': _w((lambda *s: torch.randn(*s, dtype=torch.bfloat16) * 0.1)(Fh, D))}
    _B_in = _B_setup()
    return {'A_x': _A_in['x'], 'A_k_cache': _A_in['k_cache'], 'A_v_cache': _A_in['v_cache'], 'A_wq': _A_in['wq'], 'A_wo': _A_in['wo'], 'B_x': _B_in['x'], 'B_w_in': _B_in['w_in'], 'B_w_sp': _B_in['w_sp'], 'B_b_sp': _B_in['b_sp'], 'B_w_out': _B_in['w_out']}

def reference(A_x, A_k_cache, A_v_cache, A_wq, A_wo, B_x, B_w_in, B_w_sp, B_b_sp, B_w_out):

    def _A_ref(x, k_cache, v_cache, wq, wo):
        B, Sq, D = x.shape
        H, Dh = (32, 128)
        q = (lambda x, *d: x.permute(*d))((x @ wq).reshape(B, Sq, H, Dh), 0, 2, 1, 3)
        scores = torch.einsum('bhqd,bhkd->bhqk', q, k_cache) * Dh ** (-0.5)
        p = _softmax(scores, axis=-1)
        o = torch.einsum('bhqk,bhkd->bhqd', p, v_cache)
        return (lambda x, *d: x.permute(*d))(o, 0, 2, 1, 3).reshape(B, Sq, H * Dh) @ wo

    def _B_ref(x, w_in, w_sp, b_sp, w_out):
        B, S, D = x.shape
        F = w_in.shape[-1]
        Fh = F // 2
        z = _gelu(torch.einsum('bsd,df->bsf', x, w_in))
        z1 = z[..., :Fh].clone()
        z2 = _layernorm(z[..., Fh:], axis=-1)
        g = torch.einsum('ts,bsf->btf', w_sp, z2) + b_sp[None, :, None]
        return torch.einsum('bsf,fd->bsd', z1 * g, w_out)
    x = A_x
    xn = _layernorm(x, axis=-1)
    s = _A_ref(xn, A_k_cache, A_v_cache, A_wq, A_wo)
    g = _silu(_B_ref(xn, B_w_in, B_w_sp, B_b_sp, B_w_out))
    return x + s * g
```

```python
class Asm:
    def __init__(self):
        self.lines = []
        self._lbl = 0
    def e(self, s):
        self.lines.append("    " + s)
    def c(self, s):
        self.lines.append("    ; " + s)
    def label(self, name):
        self.lines.append(name + ":")
    def newlabel(self, base="L"):
        self._lbl += 1
        return f"{base}_{self._lbl}"
    def raw(self, s):
        self.lines.append(s)
    def text(self):
        return "\n".join(self.lines) + "\n"
    def many(self, lst):
        for s in lst: self.e(s)

def vr(b, n=1):
    return f"v{b}" if n == 1 else f"v[{b}:{b+n-1}]"
def ar(b, n=1):
    return f"a{b}" if n == 1 else f"a[{b}:{b+n-1}]"
def sr(b, n=1):
    return f"s{b}" if n == 1 else f"s[{b}:{b+n-1}]"

def cost(ins):
    op = ins.split()[0]
    if op in ("v_exp_f32", "v_rcp_f32", "v_log_f32", "v_rsq_f32", "v_sqrt_f32"): return 8
    if op.startswith("buffer_load") and ins.rstrip().endswith("lds"): return 16
    return 4

def distribute(items, ngaps, fixed=None):
    fixed = fixed or {}
    gaps = [list(fixed.get(g, [])) for g in range(ngaps)]
    fixed_cost = [sum(cost(i) for i in gaps[g]) for g in range(ngaps)]
    total = sum(cost(i) for i in items) + sum(fixed_cost)
    per = total / ngaps
    g = 0
    acc = fixed_cost[0]
    for it in items:
        c = cost(it)
        while g < ngaps - 1 and acc + c / 2 > per * (g + 1):
            g += 1
            acc += fixed_cost[g]
        gaps[g].append(it)
        acc += c
    return gaps

def kernel_header(a, name):
    a.raw(f".globl {name}")
    a.raw(".p2align 8")
    a.raw(f".type {name},@function")
    a.label(name)

def kernel_desc(name, nvgpr_arch, nagpr, nsgpr):
    acc = (nvgpr_arch + 3) // 4 * 4
    nfv = acc + nagpr if nagpr else nvgpr_arch
    return f""".amdhsa_kernel {name}
  .amdhsa_next_free_vgpr {nfv}
  .amdhsa_next_free_sgpr {nsgpr}
  .amdhsa_accum_offset {acc}
  .amdhsa_group_segment_fixed_size 0
  .amdhsa_kernarg_size 104
  .amdhsa_user_sgpr_count 2
  .amdhsa_user_sgpr_kernarg_segment_ptr 1
  .amdhsa_system_sgpr_workgroup_id_x 1
.end_amdhsa_kernel
"""

def make_srd(a, d, base_lo, base_hi, nbytes, off_lo=None):
    if off_lo is None:
        a.e(f"s_mov_b32 s{d}, s{base_lo}")
        a.e(f"s_mov_b32 s{d+1}, s{base_hi}")
    else:
        a.e(f"s_add_u32 s{d}, s{base_lo}, {off_lo}")
        a.e(f"s_addc_u32 s{d+1}, s{base_hi}, 0")
    a.e(f"s_mov_b32 s{d+2}, {nbytes}")
    a.e(f"s_mov_b32 s{d+3}, 0x20000")

WS_XN  = 0
WS_Z   = 4 << 20
WS_Z2N = 12 << 20
WS_T   = 16 << 20
WS_S   = 20 << 20
WS_O   = 48 << 20
WS_Q   = 64 << 20

OPT = {'prefetch': True}
```

```python
from asmlib import *

def gen_attn(a, NB=2, name="attn_kernel", THR_LOG2=20, stamp=False):
    NW = 8 // NB
    NPW = 16 // NW
    KADDR = 8; VADDR = 16; KDMA = 20; VDMA = 24; L = 25; BS = 27; E = 28
    SB = 32
    def S(buf, b): return SB + (buf * NB + b) * 16
    CIB = SB + 2 * NB * 16
    def CI(b): return CIB + 16 * b
    PB = CIB + 16 * NB
    def P(buf, b): return PB + (buf * NB + b) * 8
    NV = PB + 16 * NB
    def O(b, db): return (b * 4 + db) * 16
    QB = 64 * NB
    def Q(b, s): return QB + (b * 8 + s) * 4
    KFB = QB + 32 * NB
    def KF(s): return KFB + 4 * s
    VFB = KFB + 32
    def VF(db, ks): return VFB + (db * 2 + ks) * 4
    NA = VFB + 32
    sK, sV, sQ, sO = 4, 8, 12, 16
    sW, sM0, sKT, sVT, sIT, sTHR, sHEAD, sQB, sT = 20, 21, 22, 23, 30, 31, 32, 33, 34
    VBASE = 65536
    slow_blocks = []

    kernel_header(a, name)
    e = a.e
    e("s_cmp_ge_u32 s2, 256")
    e(f"s_cbranch_scc1 {name}_done")
    if stamp:
        e("s_memtime s[40:41]")
        e("s_memrealtime s[42:43]")
        e("s_load_dwordx2 s[56:57], s[0:1], 88")
    e("s_load_dwordx4 s[24:27], s[0:1], 8")
    e("s_load_dwordx2 s[28:29], s[0:1], 96")
    e(f"s_and_b32 s{sT}, s2, 7")
    e(f"s_lshl_b32 s{sT}, s{sT}, 2")
    e(f"s_lshr_b32 s{sHEAD}, s2, 6")
    e(f"s_add_u32 s{sHEAD}, s{sHEAD}, s{sT}")
    e(f"s_lshr_b32 s{sQB}, s2, 3")
    e(f"s_and_b32 s{sQB}, s{sQB}, 7")
    e("v_lshrrev_b32 v1, 6, v0")
    e("v_and_b32 v2, 63, v0")
    e("s_nop 0")
    e(f"v_readfirstlane_b32 s{sW}, v1")
    e(f"s_lshl_b32 s{sT}, s{sHEAD}, 19")
    e("s_waitcnt lgkmcnt(0)")
    make_srd(a, sK, 24, 25, 524288, f"s{sT}")
    make_srd(a, sV, 26, 27, 524288, f"s{sT}")
    make_srd(a, sQ, 28, 29, 16 << 20, WS_Q)
    make_srd(a, sO, 28, 29, 16 << 20, WS_O)
    e(f"s_mul_i32 s{sM0}, s{sW}, {NPW*1024}")
    e(f"s_mov_b32 s{sTHR}, {hex((127 + THR_LOG2) << 23)}")
    e("v_and_b32 v3, 31, v2")
    e(f"s_lshl_b32 s{sT}, s{sQB}, 8")
    e(f"s_mul_i32 s35, s{sW}, {32*NB}")
    e(f"s_add_u32 s{sT}, s{sT}, s35")
    e(f"v_add_u32 v3, s{sT}, v3")
    e("v_lshlrev_b32 v3, 13, v3")
    e("v_lshrrev_b32 v4, 5, v2")
    e("v_lshlrev_b32 v5, 4, v4")
    e(f"s_lshl_b32 s{sT}, s{sHEAD}, 8")
    e(f"v_add3_u32 v3, v3, v5, s{sT}")
    for b in range(NB):
        e(f"s_mov_b32 s{sT}, {b*32*8192}")
        for s in range(8):
            e(f"buffer_load_dwordx4 {ar(Q(b,s),4)}, v3, {sr(sQ,4)}, s{sT} offen offset:{s*32}")
    e("v_lshrrev_b32 v5, 4, v2")
    e("v_and_b32 v6, 15, v2")
    e(f"s_lshl_b32 s{sT}, s{sW}, {2 + (NPW.bit_length()-1)}")
    e(f"v_add_u32 v7, s{sT}, v5")
    for i in range(NPW):
        e(f"v_add_u32 v1, {4*i}, v7")
        e("v_and_b32 v1, 15, v1")
        e("v_xor_b32 v1, v1, v6")
        e("v_lshlrev_b32 v1, 4, v1")
        e(f"v_lshl_add_u32 v{KDMA+i}, v7, 8, v1")
    e("v_lshlrev_b32 v1, 2, v5")
    e("v_xor_b32 v1, v1, v6")
    e("v_lshlrev_b32 v1, 4, v1")
    e(f"v_lshl_add_u32 v{VDMA}, v7, 8, v1")
    e(f"s_mov_b32 s{sKT}, 0")
    e(f"s_mov_b32 s{sVT}, 0")
    def dma_k(stage):
        r = [f"s_add_u32 m0, s{sM0}, {stage*16384}", "s_nop 0"]
        for i in range(NPW):
            r.append(f"buffer_load_dwordx4 v{KDMA+i}, {sr(sK,4)}, s{sKT} offen offset:{i*1024} lds")
        r.append(f"s_add_u32 s{sKT}, s{sKT}, 16384")
        return r
    def dma_v(stage):
        r = [f"s_add_u32 m0, s{sM0}, {VBASE + stage*16384}", "s_nop 0"]
        for i in range(NPW):
            r.append(f"buffer_load_dwordx4 v{VDMA}, {sr(sV,4)}, s{sVT} offen offset:{i*1024} lds")
        r.append(f"s_add_u32 s{sVT}, s{sVT}, 16384")
        return r
    a.many(dma_k(0)); a.many(dma_k(1)); a.many(dma_v(0)); a.many(dma_k(2)); a.many(dma_v(1)); a.many(dma_k(3)); a.many(dma_v(2))
    e("v_and_b32 v1, 31, v2")
    e("v_and_b32 v5, 15, v2")
    for s in range(8):
        e(f"v_add_u32 v6, {2*s}, v4")
        e("v_xor_b32 v6, v6, v5")
        e("v_lshlrev_b32 v6, 4, v6")
        e(f"v_lshl_add_u32 v{KADDR+s}, v1, 8, v6")
    e("v_lshrrev_b32 v6, 2, v5")
    e("v_lshl_add_u32 v7, v4, 2, v6")
    e("v_lshlrev_b32 v7, 8, v7")
    e("v_and_b32 v1, 3, v2")
    e("v_lshl_add_u32 v7, v1, 3, v7")
    e("v_bfe_u32 v1, v2, 4, 1")
    e("v_lshl_add_u32 v7, v1, 5, v7")
    e(f"v_add_u32 v7, {VBASE}, v7")
    for db in range(4):
        e(f"v_xor_b32 v1, {db}, v6")
        e(f"v_lshl_add_u32 v{VADDR+db}, v1, 6, v7")
    for r in range(64 * NB): e(f"v_accvgpr_write_b32 a{r}, 0")
    for r in range(32): e(f"v_accvgpr_write_b32 a{VFB+r}, 0")
    for b in range(NB):
        for r in range(8): e(f"v_mov_b32 v{P(1,b)+r}, 0")
        e(f"v_mov_b32 v{L+b}, 0")
    def kread(s, ht):
        off = ((ht >> 1) % 4) * 16384 + (ht & 1) * 8192
        return f"ds_read_b128 {ar(KF(s),4)}, v{KADDR+s} offset:{off}"
    def vread(db, ks, ht):
        off = ((ht >> 1) % 4) * 16384 + (ht & 1) * 8192 + ks * 4096
        return [f"ds_read_b64_tr_b16 {ar(VF(db,ks),2)}, v{VADDR+db} offset:{off}",
                f"ds_read_b64_tr_b16 {ar(VF(db,ks)+2,2)}, v{VADDR+db} offset:{off+2048}"]
    e(f"s_waitcnt vmcnt({5*NPW})")
    e("s_barrier")
    for s in range(8): e(kread(s, 0))
    e("s_waitcnt lgkmcnt(0)")
    for b in range(NB):
        for s in range(8):
            c = "0" if s == 0 else vr(S(0,b),16)
            e(f"v_mfma_f32_32x32x16_bf16 {vr(S(0,b),16)}, {ar(KF(s),4)}, {ar(Q(b,s),4)}, {c}")
    for s in range(8): e(kread(s, 1))
    e("s_nop 15"); e("s_nop 3")
    def rowmax(dst, tmp, base):
        r = [f"v_max3_f32 v{dst}, v{base}, v{base+1}, v{base+2}"]
        for i in range(3, 15, 2):
            r.append(f"v_max3_f32 v{dst}, v{dst}, v{base+i}, v{base+i+1}")
        r.append(f"v_max_f32 v{dst}, v{dst}, v{base+15}")
        r += [f"v_mov_b32 v{tmp}, v{dst}", "s_nop 1", f"v_permlane32_swap_b32 v{tmp}, v{dst}", "s_nop 1",
              f"v_max_f32 v{dst}, v{dst}, v{tmp}"]
        return r
    for b in range(NB):
        a.many(rowmax(E, E+1, S(0,b)))
        for r in range(16):
            e(f"v_sub_f32 v{CI(b)+r}, 0, v{E}")
            e(f"v_sub_f32 v{S(0,b)+r}, v{S(0,b)+r}, v{E}")
    e(f"s_mov_b32 s{sIT}, 0")
    e("s_waitcnt lgkmcnt(0)")
    e("s_nop 1")

    def sm_list(p, b):
        sb = S(p, b); pb = P(p, b)
        def ea(q): return E + 2 * (q % 2)
        def eb(q): return E + 2 * (q % 2) + 1
        r = [f"v_exp_f32 v{ea(0)}, v{sb}", f"v_exp_f32 v{eb(0)}, v{sb+1}"]
        for q in range(1, 9):
            pq = q - 1
            if q < 8: r.append(f"v_exp_f32 v{ea(q)}, v{sb+2*q}")
            if pq == 0:
                r.append(f"v_add_f32 v{BS}, v{ea(0)}, v{eb(0)}")
            else:
                r.append(f"v_add_f32 v{BS}, v{BS}, v{ea(pq)}")
                r.append(f"v_add_f32 v{BS}, v{BS}, v{eb(pq)}")
            if q < 8: r.append(f"v_exp_f32 v{eb(q)}, v{sb+2*q+1}")
            r.append(f"v_cvt_pk_bf16_f32 v{pb+pq}, v{ea(pq)}, v{eb(pq)}")
        return r

    def slow(lbl, ret, p, b):
        r = [lbl + ":"]
        x = ["s_nop 15", "s_nop 15"]
        x += rowmax(E, E+1, S(p, b))
        x += [f"v_ceil_f32 v{E}, v{E}", f"v_max_f32 v{E}, 0, v{E}",
              f"v_cvt_i32_f32 v{E+1}, v{E}", f"v_sub_u32 v{E+1}, 0, v{E+1}",
              f"v_ldexp_f32 v{E+1}, 1.0, v{E+1}"]
        for rr in range(64):
            x += [f"v_accvgpr_read_b32 v{E+2}, a{O(b,0)+rr}", f"v_mul_f32 v{E+2}, v{E+2}, v{E+1}",
                  f"v_accvgpr_write_b32 a{O(b,0)+rr}, v{E+2}"]
        x.append(f"v_mul_f32 v{L+b}, v{L+b}, v{E+1}")
        for rr in range(16):
            x += [f"v_sub_f32 v{CI(b)+rr}, v{CI(b)+rr}, v{E}", f"v_sub_f32 v{S(p,b)+rr}, v{S(p,b)+rr}, v{E}",
                  f"v_sub_f32 v{S(1-p,b)+rr}, v{S(1-p,b)+rr}, v{E}"]
        x += sm_list(p, b)
        x += ["s_nop 1", f"s_branch {ret}"]
        return r + ["    " + i for i in x]

    if stamp:
        e("s_memtime s[44:45]")
        e("s_waitcnt lgkmcnt(0)")
    a.raw(".p2align 6")
    a.label(f"{name}_loop")
    for uu in range(8):
        p = uu & 1
        a.c(f"==== slot {uu}")
        for b in range(NB):
            mf = []
            for s in range(8):
                c = vr(CI(b),16) if s == 0 else vr(S(1-p,b),16)
                mf.append(f"v_mfma_f32_32x32x16_bf16 {vr(S(1-p,b),16)}, {ar(KF(s),4)}, {ar(Q(b,s),4)}, {c}")
            pv = [(db, ks) for ks in range(2) for db in range(4)]
            for (db, ks) in pv:
                mf.append(f"v_mfma_f32_32x32x16_bf16 {ar(O(b,db),16)}, {ar(VF(db,ks),4)}, {vr(P(1-p,b)+4*ks,4)}, {ar(O(b,db),16)}")
            fixed = {g: [] for g in range(16)}
            tail = {g: [] for g in range(16)}
            if b == NB - 1:
                for s in range(8): fixed[s].append(kread(s, uu + 2))
                for i, (db, ks) in enumerate(pv): fixed[8 + i] += vread(db, ks, uu)
                fixed[10].insert(0, "s_waitcnt lgkmcnt(4)")
            if b == 0:
                w = 8 if NB == 1 else 0
                if p == 0:
                    tail[7] += [f"s_waitcnt vmcnt({3*NPW}) lgkmcnt({w})", "s_barrier"]
                    d = dma_k((uu >> 1) % 4)
                else:
                    tail[7] += [f"s_waitcnt lgkmcnt({w})"]
                    d = dma_v(((uu >> 1) + 3) % 4)
                fixed[8].append(d[0])
                for i in range(NPW):
                    fixed[9 + i * (2 if NPW <= 2 else 1) + (1 if NPW <= 2 else 0)].append(d[2 + i])
                fixed[15].append(d[-1])
            lbl = f"{name}_slow_{uu}_{b}"; ret = f"{name}_ret_{uu}_{b}"
            items = sm_list(p, b)
            chk = [f"v_cmp_lt_f32 vcc, s{sTHR}, v{BS}", f"s_cbranch_vccnz {lbl}", ret + ":", f"v_add_f32 v{L+b}, v{L+b}, v{BS}"]
            if uu == 7 and b == NB - 1:
                chk += [f"s_add_u32 s{sIT}, s{sIT}, 1", f"s_cmp_lt_u32 s{sIT}, 8", f"s_cbranch_scc1 {name}_loop"]
            gaps = distribute(items + ["s_nop 0"] * 3, 16, fixed)
            gaps = [[i for i in g if i != "s_nop 0"] for g in gaps]
            for g in range(16):
                e(mf[g])
                for i in gaps[g]: e(i)
                for i in tail[g]: e(i)
            for i in chk:
                if i.endswith(":"): a.raw(i)
                else: e(i)
            slow_blocks += slow(lbl, ret, p, b)
    if stamp:
        e("s_memtime s[46:47]")
    e("s_waitcnt lgkmcnt(0)")
    for b in range(NB):
        for ks in range(2):
            for db in range(4):
                e(f"v_mfma_f32_32x32x16_bf16 {ar(O(b,db),16)}, {ar(VF(db,ks),4)}, {vr(P(1,b)+4*ks,4)}, {ar(O(b,db),16)}")
    for b in range(NB):
        e(f"v_mov_b32 v{E}, v{L+b}")
        e("s_nop 1")
        e(f"v_permlane32_swap_b32 v{E}, v{L+b}")
        e("s_nop 1")
        e(f"v_add_f32 v{L+b}, v{L+b}, v{E}")
        e(f"v_rcp_f32 v{L+b}, v{L+b}")
    e("s_nop 15")
    T = S(0, 0)
    for b in range(NB):
        e(f"s_mov_b32 s{sT}, {b*32*8192}")
        for db in range(4):
            for gp in range(2):
                t = T + ((db * 2 + gp) % 4) * 12
                for i in range(8):
                    e(f"v_accvgpr_read_b32 v{t+4+i}, a{O(b,db)+8*gp+i}")
                for i in range(8):
                    e(f"v_mul_f32 v{t+4+i}, v{t+4+i}, v{L+b}")
                for i in range(4):
                    e(f"v_cvt_pk_bf16_f32 v{t+i}, v{t+4+2*i}, v{t+4+2*i+1}")
                e("s_nop 1")
                e(f"v_permlane32_swap_b32 v{t}, v{t+2}")
                e(f"v_permlane32_swap_b32 v{t+1}, v{t+3}")
                e("s_nop 1")
                e(f"buffer_store_dwordx4 {vr(t,4)}, v3, {sr(sO,4)}, s{sT} offen offset:{db*64+gp*32}")
    if stamp:
        e("s_waitcnt vmcnt(0)")
        e("s_memtime s[48:49]")
        e("s_memrealtime s[50:51]")
        e("s_waitcnt lgkmcnt(0)")
        e("s_mov_b32 s58, 256")
        e("s_mov_b32 s59, 0x20000")
        e(f"s_cmp_lg_u32 s{sW}, 0")
        e(f"s_cbranch_scc1 {name}_done")
        e("s_and_b32 s60, s2, 0x3f")
        e("s_cmp_lg_u32 s60, 5")
        e(f"s_cbranch_scc1 {name}_done")
        e("s_lshr_b32 s60, s2, 6")
        e("s_lshl_b32 s60, s60, 6")
        for i in range(12):
            e(f"v_mov_b32 v{32+i}, s{40+i}")
        e("v_mov_b32 v1, 0")
        e("v_cmp_eq_u32 vcc, 0, v2")
        e("s_and_saveexec_b64 s[62:63], vcc")
        for i in range(3):
            e(f"buffer_store_dwordx4 v[{32+4*i}:{35+4*i}], v1, s[56:59], s60 offen offset:{16*i}")
        e("s_waitcnt vmcnt(0)")
    a.label(f"{name}_done")
    e("s_endpgm")
    for l in slow_blocks: a.raw(l)
    return kernel_desc(name, NV, NA, 64), (256, NW * 64, 131072)

if __name__ == "__main__":
    import sys
    NB = int(sys.argv[1]) if len(sys.argv) > 1 else 2
    a = Asm()
    stamp = len(sys.argv) > 2
    desc, (g, blk, lds) = gen_attn(a, NB, stamp=stamp)
    out = f"; attn test\n; @launch kernel=attn_kernel grid=({g},1,1) block=({blk},1,1) lds={lds}\n"
    out += '.amdgcn_target "amdgcn-amd-amdhsa--gfx950"\n.text\n' + a.text()
    out += '.section .rodata,"a"\n.p2align 6\n' + desc
    open(f"attn_nb{NB}{'_st' if stamp else ''}.s", "w").write(out)
```

```python
from asmlib import *
import math, struct

def f32hex(x):
    return hex(struct.unpack("<I", struct.pack("<f", x))[0])

def src_srd(a, d, src, nbytes):
    kind, val = src
    if kind == 'in':
        a.e(f"s_load_dwordx2 s[{d}:{d+1}], s[0:1], {val*8}")
        return [("post", d, None, nbytes)]
    else:
        a.e(f"s_load_dwordx2 s[{d}:{d+1}], s[0:1], 96")
        return [("post", d, val, nbytes)]

def finish_srd(a, items):
    for (_, d, off, nbytes) in items:
        if off:
            a.e(f"s_add_u32 s{d}, s{d}, {off}")
            a.e(f"s_addc_u32 s{d+1}, s{d+1}, 0")
        a.e(f"s_mov_b32 s{d+2}, {nbytes}")
        a.e(f"s_mov_b32 s{d+3}, 0x20000")

def gen_gemm(a, name, M, N, K, lda, ldb, Asrc, Abytes, Bsrc, Bbytes, Csrc, Cbytes, ldc, epi,
             Mt=128, Nt=128, WM=2, WN=2, NST=3, aux=None):
    NW = WM * WN
    MB = Mt // WM // 32
    NBk = Nt // WN // 32
    KT = (K + 63) // 64
    MT = M // Mt
    NT = (N + Nt - 1) // Nt
    assert MT % 8 == 0
    MPX = MT // 8
    nwg = MT * NT
    ABYTES = Mt * 128
    BBYTES = 64 * Nt * 2
    STG = ABYTES + BBYTES
    PA = Mt // 8 // NW
    PB = BBYTES // 1024 // NW
    assert PA >= 1 and PB >= 1 and PA <= 4 and PB <= 4
    PPW = PA + PB
    BROW = Nt * 2
    assert Nt in (64, 128)
    RPP = 1024 // BROW
    lds = STG * NST
    AAD = 8
    BAD = 12
    ADM = 16
    BDM = 20
    VC = 24
    VX = 25
    T0 = 26
    ACC = 48
    def acc(mb, nb): return ACC + (mb * NBk + nb) * 16
    FR = ACC + MB * NBk * 16
    def fa(buf, mb): return FR + buf * (MB + NBk) * 4 + mb * 4
    def fb(buf, nb): return FR + buf * (MB + NBk) * 4 + MB * 4 + nb * 4
    NV = FR + 2 * (MB + NBk) * 4
    sA, sB, sC, sX1, sX2 = 4, 8, 12, 16, 20
    sW, sM0, sAK, sBK, sIT, sM, sN, sT, sWM, sWN, sC0, sC1, sC2 = 24, 25, 26, 27, 28, 29, 30, 31, 32, 33, 34, 35, 36
    e = a.e
    kernel_header(a, name)
    e(f"s_cmp_ge_u32 s2, {nwg}")
    e(f"s_cbranch_scc1 {name}_done")
    post = []
    post += src_srd(a, sA, Asrc, Abytes)
    post += src_srd(a, sB, Bsrc, Bbytes)
    post += src_srd(a, sC, Csrc, Cbytes)
    if aux:
        post += src_srd(a, sX1, aux[0][0], aux[0][1])
        if len(aux) > 1: post += src_srd(a, sX2, aux[1][0], aux[1][1])
    assert MPX & (MPX - 1) == 0
    lg = MPX.bit_length() - 1
    e(f"s_and_b32 s{sM}, s2, 7")
    e(f"s_lshl_b32 s{sM}, s{sM}, {lg}")
    e(f"s_lshr_b32 s{sT}, s2, 3")
    e(f"s_and_b32 s{sN}, s{sT}, {MPX-1}")
    e(f"s_add_u32 s{sM}, s{sM}, s{sN}")
    e(f"s_lshr_b32 s{sN}, s{sT}, {lg}")
    e(f"s_mul_i32 s{sM}, s{sM}, {Mt}")
    e(f"s_mul_i32 s{sN}, s{sN}, {Nt}")
    e("v_lshrrev_b32 v1, 6, v0")
    e("v_and_b32 v2, 63, v0")
    e("s_nop 0")
    e(f"v_readfirstlane_b32 s{sW}, v1")
    e("s_waitcnt lgkmcnt(0)")
    finish_srd(a, post)
    e(f"s_and_b32 s{sWN}, s{sW}, {WN-1}")
    e(f"s_lshr_b32 s{sWM}, s{sW}, {WN.bit_length()-1}")
    e("v_lshrrev_b32 v3, 3, v2")
    e("v_and_b32 v4, 7, v2")
    e(f"s_mul_i32 s{sT}, s{sW}, {8*PA}")
    e(f"v_add_u32 v3, s{sT}, v3")
    e(f"s_mov_b32 s{sC0}, {lda*2}")
    for i in range(PA):
        e(f"v_add_u32 v5, {8*i}, v3")
        e("v_bfe_u32 v6, v5, 1, 3")
        e("v_xor_b32 v6, v6, v4")
        e(f"v_add_u32 v5, s{sM}, v5")
        e(f"v_mul_lo_u32 v5, v5, s{sC0}")
        e("v_lshl_add_u32 v5, v6, 4, v5")
        if i: e(f"v_subrev_u32 v5, {1024*i}, v5")
        e(f"v_mov_b32 v{ADM+i}, v5")
    CPR = 64 // RPP
    lgc = CPR.bit_length() - 1
    e(f"v_lshrrev_b32 v3, {lgc}, v2")
    e(f"v_and_b32 v4, {CPR-1}, v2")
    e(f"s_mul_i32 s{sT}, s{sW}, {RPP*PB}")
    e(f"v_add_u32 v3, s{sT}, v3")
    e(f"s_mov_b32 s{sC0}, {ldb*2}")
    e(f"s_lshl_b32 s{sC1}, s{sN}, 1")
    for i in range(PB):
        e(f"v_add_u32 v5, {RPP*i}, v3")
        if Nt == 128: e("v_and_b32 v6, 3, v5")
        else: e("v_bfe_u32 v6, v5, 1, 1")
        e("v_lshlrev_b32 v6, 2, v6")
        e("v_xor_b32 v6, v6, v4")
        e(f"v_mul_lo_u32 v5, v5, s{sC0}")
        e("v_lshl_add_u32 v5, v6, 4, v5")
        e(f"v_add_u32 v5, s{sC1}, v5")
        if i: e(f"v_subrev_u32 v5, {1024*i}, v5")
        e(f"v_mov_b32 v{BDM+i}, v5")
    e(f"s_mul_i32 s{sM0}, s{sW}, {PA*1024}")
    e(f"s_mul_i32 s{sC2}, s{sW}, {PB*1024}")
    e(f"s_mov_b32 s{sAK}, 0")
    e(f"s_mov_b32 s{sBK}, 0")
    def dma(stage):
        r = [f"s_add_u32 m0, s{sM0}, {stage*ABYTES}", "s_nop 0"]
        for i in range(PA):
            r.append(f"buffer_load_dwordx4 v{ADM+i}, {sr(sA,4)}, s{sAK} offen offset:{i*1024} lds")
        r.append(f"s_add_u32 m0, s{sC2}, {NST*ABYTES+stage*BBYTES}")
        r.append(f"s_add_u32 s{sAK}, s{sAK}, 128")
        for i in range(PB):
            r.append(f"buffer_load_dwordx4 v{BDM+i}, {sr(sB,4)}, s{sBK} offen offset:{i*1024} lds")
        r.append(f"s_add_u32 s{sBK}, s{sBK}, {64*ldb*2}")
        return r
    for st in range(min(NST, KT)): a.many(dma(st))
    e("v_and_b32 v3, 31, v2")
    e("v_lshrrev_b32 v4, 5, v2")
    e("v_bfe_u32 v5, v3, 1, 3")
    e(f"s_mul_i32 s{sT}, s{sWM}, {MB*32*128}")
    for ks in range(4):
        e(f"v_add_u32 v6, {2*ks}, v4")
        e("v_xor_b32 v6, v6, v5")
        e("v_lshlrev_b32 v6, 4, v6")
        e("v_lshl_add_u32 v6, v3, 7, v6")
        e(f"v_add_u32 v{AAD+ks}, s{sT}, v6")
    e("v_bfe_u32 v5, v2, 2, 2")
    e("v_lshl_add_u32 v6, v4, 3, v5")
    e(f"v_mul_u32_u24 v6, {BROW}, v6")
    e("v_and_b32 v7, 3, v2")
    e("v_lshl_add_u32 v6, v7, 3, v6")
    e("v_bfe_u32 v7, v2, 4, 1")
    e("v_lshl_add_u32 v6, v7, 5, v6")
    e(f"v_add_u32 v6, {NST*ABYTES}, v6")
    if Nt == 64: e("v_lshrrev_b32 v5, 1, v5")
    e(f"s_mul_i32 s{sT}, s{sWN}, {NBk}")
    for nb in range(NBk):
        e(f"s_add_u32 s{sC0}, s{sT}, {nb}")
        e(f"v_xor_b32 v7, s{sC0}, v5")
        e(f"v_lshl_add_u32 v{BAD+nb}, v7, 6, v6")
    for r in range(MB * NBk * 16): e(f"v_mov_b32 v{ACC+r}, 0")
    def reads(buf, stage, ks):
        r = []
        for mb in range(MB):
            r.append(f"ds_read_b128 {vr(fa(buf,mb),4)}, v{AAD+ks} offset:{stage*ABYTES + mb*4096}")
        for nb in range(NBk):
            off = stage * BBYTES + ks * 16 * BROW
            r.append(f"ds_read_b64_tr_b16 {vr(fb(buf,nb),2)}, v{BAD+nb} offset:{off}")
            r.append(f"ds_read_b64_tr_b16 {vr(fb(buf,nb)+2,2)}, v{BAD+nb} offset:{off+4*BROW}")
        return r
    assert NST * ABYTES <= 65536 and NST * BBYTES <= 65536
    e(f"s_waitcnt vmcnt({(min(NST,KT)-1)*PPW})")
    e("s_barrier")
    a.many(reads(0, 0, 0))
    def tile_code(kt_static, stage, is_last, do_dma, vm):
        for ks in range(4):
            buf = ks & 1
            mf = []
            for mb in range(MB):
                for nb in range(NBk):
                    mf.append(f"v_mfma_f32_32x32x16_bf16 {vr(acc(mb,nb),16)}, {vr(fb(buf,nb),4)}, {vr(fa(buf,mb),4)}, {vr(acc(mb,nb),16)}")
            pre = ["s_waitcnt lgkmcnt(0)"]
            fill = []
            if ks < 3:
                fill = reads(1 - buf, stage, ks + 1)
            elif not is_last:
                pre = [f"s_waitcnt vmcnt({vm}) lgkmcnt(0)", "s_barrier"]
                fill = reads(0, (stage + 1) % NST, 0)
                if do_dma: fill += dma(stage)
            a.many(pre)
            gaps = distribute(fill, len(mf))
            for g in range(len(mf)):
                e(mf[g])
                a.many(gaps[g])
    G = max(0, (KT - NST) // NST) if KT > 16 else 0
    if G > 0:
        e(f"s_mov_b32 s{sIT}, 0")
        a.raw(".p2align 6")
        a.label(f"{name}_loop")
        for st in range(NST):
            tile_code(None, st, False, True, (NST - 2) * PPW)
        e(f"s_add_u32 s{sIT}, s{sIT}, 1")
        e(f"s_cmp_lt_u32 s{sIT}, {G}")
        e(f"s_cbranch_scc1 {name}_loop")
    for kt in range(G * NST, KT):
        vm = (min(kt + NST - 1, KT - 1) - (kt + 1)) * PPW
        tile_code(kt, kt % NST, kt == KT - 1, kt + NST < KT, max(vm, 0))
    e("s_nop 15")
    e(f"s_mul_i32 s{sT}, s{sWM}, {MB*32}")
    e(f"s_add_u32 s{sT}, s{sT}, s{sM}")
    e(f"v_add_u32 v3, s{sT}, v3")
    e(f"s_mul_i32 s{sT}, s{sWN}, {NBk*32}")
    e(f"s_add_u32 s{sN}, s{sN}, s{sT}")
    e(f"s_mov_b32 s{sC0}, {ldc*2}")
    e(f"v_mul_lo_u32 v{VC}, v3, s{sC0}")
    e(f"v_lshl_add_u32 v{VC}, v4, 4, v{VC}")
    e(f"s_lshl_b32 s{sC1}, s{sN}, 1")
    e(f"v_add_u32 v{VC}, s{sC1}, v{VC}")
    LOG2E = math.log2(math.e)
    kind = epi
    if kind == 'q':
        e(f"s_mov_b32 s{sC2}, {f32hex(LOG2E / math.sqrt(128.0))}")
    if kind == 'gelu':
        e(f"s_mov_b32 s{sC2}, {f32hex(0.044715)}")
        e(f"s_mov_b32 s{sAK}, {f32hex(-2.0 * math.sqrt(2.0 / math.pi) * LOG2E)}")
    if kind == 'final':
        e(f"s_mov_b32 s{sC2}, {f32hex(-LOG2E)}")
    e(f"s_mov_b32 s{sBK}, 0xffff0000")
    if kind in ('sp', 'final'):
        ldx = aux[0][2]
        e(f"s_mov_b32 s{sC0}, {ldx*2}")
        e(f"v_mul_lo_u32 v{VX}, v3, s{sC0}")
        e(f"v_lshl_add_u32 v{VX}, v4, 3, v{VX}")
        e(f"v_add_u32 v{VX}, s{sC1}, v{VX}")
        e("v_lshlrev_b32 v5, 1, v3")
    def rnd(dst0, dst1, a0, a1, tmp):
        return [f"v_cvt_pk_bf16_f32 v{tmp}, v{a0}, v{a1}", f"v_lshlrev_b32 v{dst0}, 16, v{tmp}", f"v_and_b32 v{dst1}, s{sBK}, v{tmp}"]
    for mb in range(MB):
        if kind == 'sp':
            e(f"buffer_load_ushort v6, v5, {sr(sX2,4)}, 0 offen offset:{mb*64}")
        for nb in range(NBk):
            skip = None
            if N % Nt:
                skip = a.newlabel(name + "_skip")
                e(f"s_add_u32 s{sT}, s{sN}, {nb*32}")
                e(f"s_cmp_ge_u32 s{sT}, {N}")
                e(f"s_cbranch_scc1 {skip}")
            A0 = acc(mb, nb)
            X1 = T0; X2 = T0 + 8; TT = T0 + 16
            if kind in ('sp', 'final'):
                ldx = aux[0][2]
                e(f"s_mov_b32 s{sT}, {mb*32*ldx*2}")
                for g in range(4):
                    e(f"buffer_load_dwordx2 {vr(X1+2*g,2)}, v{VX}, {sr(sX1,4)}, s{sT} offen offset:{nb*64+g*16}")
                if kind == 'final':
                    for g in range(4):
                        e(f"buffer_load_dwordx2 {vr(X2+2*g,2)}, v{VX}, {sr(sX2,4)}, s{sT} offen offset:{nb*64+g*16}")
                e("s_waitcnt vmcnt(0)")
                if kind == 'sp': e("v_lshlrev_b32 v7, 16, v6")
            for p in range(8):
                a0 = A0 + 2 * p; a1 = a0 + 1
                d = A0 + p
                if kind == 'q':
                    e(f"v_mul_f32 v{a0}, s{sC2}, v{a0}"); e(f"v_mul_f32 v{a1}, s{sC2}, v{a1}")
                elif kind == 'gelu':
                    a.many(rnd(a0, a1, a0, a1, TT))
                    for (x, t) in ((a0, TT), (a1, TT + 1)):
                        e(f"v_mul_f32 v{t}, v{x}, v{x}")
                        e(f"v_fma_f32 v{t}, v{t}, s{sC2}, 1.0")
                        e(f"v_mul_f32 v{t}, v{t}, v{x}")
                        e(f"v_mul_f32 v{t}, s{sAK}, v{t}")
                        e(f"v_exp_f32 v{t}, v{t}")
                    e("s_nop 0")
                    for (x, t) in ((a0, TT), (a1, TT + 1)):
                        e(f"v_add_f32 v{t}, 1.0, v{t}")
                        e(f"v_rcp_f32 v{t}, v{t}")
                    e("s_nop 0")
                    for (x, t) in ((a0, TT), (a1, TT + 1)):
                        e(f"v_mul_f32 v{x}, v{x}, v{t}")
                elif kind == 'sp':
                    a.many(rnd(a0, a1, a0, a1, TT))
                    e(f"v_add_f32 v{a0}, v{a0}, v7"); e(f"v_add_f32 v{a1}, v{a1}, v7")
                    a.many(rnd(a0, a1, a0, a1, TT))
                    e(f"v_lshlrev_b32 v{TT}, 16, v{X1+p}"); e(f"v_and_b32 v{TT+1}, s{sBK}, v{X1+p}")
                    e(f"v_mul_f32 v{a0}, v{a0}, v{TT}"); e(f"v_mul_f32 v{a1}, v{a1}, v{TT+1}")
                elif kind == 'final':
                    a.many(rnd(a0, a1, a0, a1, TT))
                    for (x, t) in ((a0, TT), (a1, TT + 1)):
                        e(f"v_mul_f32 v{t}, s{sC2}, v{x}")
                        e(f"v_exp_f32 v{t}, v{t}")
                    e("s_nop 0")
                    for (x, t) in ((a0, TT), (a1, TT + 1)):
                        e(f"v_add_f32 v{t}, 1.0, v{t}")
                        e(f"v_rcp_f32 v{t}, v{t}")
                    e("s_nop 0")
                    for (x, t) in ((a0, TT), (a1, TT + 1)):
                        e(f"v_mul_f32 v{x}, v{x}, v{t}")
                    a.many(rnd(a0, a1, a0, a1, TT))
                    e(f"v_lshlrev_b32 v{TT}, 16, v{X1+p}"); e(f"v_and_b32 v{TT+1}, s{sBK}, v{X1+p}")
                    e(f"v_mul_f32 v{a0}, v{a0}, v{TT}"); e(f"v_mul_f32 v{a1}, v{a1}, v{TT+1}")
                    a.many(rnd(a0, a1, a0, a1, TT))
                    e(f"v_lshlrev_b32 v{TT}, 16, v{X2+p}"); e(f"v_and_b32 v{TT+1}, s{sBK}, v{X2+p}")
                    e(f"v_add_f32 v{a0}, v{a0}, v{TT}"); e(f"v_add_f32 v{a1}, v{a1}, v{TT+1}")
                e(f"v_cvt_pk_bf16_f32 v{d}, v{a0}, v{a1}")
            e("s_nop 1")
            for gp in range(2):
                t = A0 + 4 * gp
                e(f"v_permlane32_swap_b32 v{t}, v{t+2}")
                e(f"v_permlane32_swap_b32 v{t+1}, v{t+3}")
            e(f"s_mov_b32 s{sT}, {mb*32*ldc*2}")
            e("s_nop 0")
            for gp in range(2):
                e(f"buffer_store_dwordx4 {vr(A0+4*gp,4)}, v{VC}, {sr(sC,4)}, s{sT} offen offset:{nb*64+gp*32}")
            if skip: a.label(skip)
    a.label(f"{name}_done")
    e("s_endpgm")
    return kernel_desc(name, NV, 0, 40), (nwg, NW * 64, lds)
```

```python
from asmlib import *
from gemm import src_srd, finish_srd, f32hex

def gen_ln(a, name, src, src_bytes, src_col_off, lds_row, ncols, dst, dst_bytes, ldd, RPW=2):
    ND = ncols // 2
    NL = (ND + 63) // 64
    rem = ND - (NL - 1) * 64
    nwg = 2048 // (4 * RPW)
    e = a.e
    kernel_header(a, name)
    e(f"s_cmp_ge_u32 s2, {nwg}")
    e(f"s_cbranch_scc1 {name}_done")
    post = src_srd(a, 4, src, src_bytes) + src_srd(a, 8, dst, dst_bytes)
    e("v_lshrrev_b32 v1, 6, v0")
    e("v_and_b32 v2, 63, v0")
    e("s_nop 0")
    e("v_readfirstlane_b32 s20, v1")
    e("s_waitcnt lgkmcnt(0)")
    finish_srd(a, post)
    e("s_lshl_b32 s21, s2, 2")
    e("s_add_u32 s21, s21, s20")
    e(f"s_mul_i32 s21, s21, {RPW}")
    e("v_lshlrev_b32 v3, 2, v2")
    e("s_mov_b32 s24, 0xffff0000")
    e(f"v_cmp_gt_u32 s[26:27], {rem}, v2")
    D = 8
    def dr(r, i): return D + (r * NL + i)
    F = D + RPW * NL
    def fl(r, i, h): return F + (r * NL + i) * 2 + h
    X = F + RPW * NL * 2
    for r in range(RPW):
        e(f"s_add_u32 s22, s21, {r}")
        e(f"s_mul_i32 s22, s22, {lds_row*2}")
        e(f"s_add_u32 s22, s22, {src_col_off*2}")
        for i in range(NL):
            e(f"buffer_load_dword v{dr(r,i)}, v3, s[4:7], s22 offen offset:{i*256}")
    e("s_waitcnt vmcnt(0)")
    def reduce(regs):
        for off in (0x041F, 0x081F, 0x101F, 0x201F, 0x401F):
            for k, rg in enumerate(regs): e(f"ds_swizzle_b32 v{X+8+k}, v{rg} offset:{hex(off)}")
            e("s_waitcnt lgkmcnt(0)")
            for k, rg in enumerate(regs): e(f"v_add_f32 v{rg}, v{rg}, v{X+8+k}")
        for k, rg in enumerate(regs): e(f"v_mov_b32 v{X+8+k}, v{rg}")
        e("s_nop 1")
        for k, rg in enumerate(regs): e(f"v_permlane32_swap_b32 v{X+8+k}, v{rg}")
        e("s_nop 1")
        for k, rg in enumerate(regs): e(f"v_add_f32 v{rg}, v{rg}, v{X+8+k}")
    for r in range(RPW):
        if rem < 64:
            e(f"v_cndmask_b32 v{dr(r,NL-1)}, 0, v{dr(r,NL-1)}, s[26:27]")
        for i in range(NL):
            e(f"v_lshlrev_b32 v{fl(r,i,0)}, 16, v{dr(r,i)}")
            e(f"v_and_b32 v{fl(r,i,1)}, s24, v{dr(r,i)}")
        e(f"v_add_f32 v{X+r}, v{fl(r,0,0)}, v{fl(r,0,1)}")
        for i in range(1, NL):
            e(f"v_add_f32 v{X+r}, v{X+r}, v{fl(r,i,0)}")
            e(f"v_add_f32 v{X+r}, v{X+r}, v{fl(r,i,1)}")
    reduce([X + r for r in range(RPW)])
    e(f"s_mov_b32 s25, {f32hex(1.0/ncols)}")
    for r in range(RPW):
        e(f"v_mul_f32 v{X+r}, s25, v{X+r}")
        e(f"v_mov_b32 v{X+4+r}, 0")
        for i in range(NL):
            for h in range(2):
                e(f"v_sub_f32 v{X+8}, v{fl(r,i,h)}, v{X+r}")
                if i == NL - 1 and rem < 64:
                    e(f"v_cndmask_b32 v{X+8}, 0, v{X+8}, s[26:27]")
                e(f"v_fmac_f32 v{X+4+r}, v{X+8}, v{X+8}")
    reduce([X + 4 + r for r in range(RPW)])
    e(f"s_mov_b32 s28, {f32hex(1e-5)}")
    for r in range(RPW):
        m = X + r; v = X + 4 + r; t = X + 8
        e(f"v_mul_f32 v{v}, s25, v{v}")
        e(f"v_cvt_pk_bf16_f32 v{t}, v{m}, v{v}")
        e(f"v_lshlrev_b32 v{m}, 16, v{t}")
        e(f"v_and_b32 v{v}, s24, v{t}")
        e(f"v_add_f32 v{v}, s28, v{v}")
        e(f"v_cvt_pk_bf16_f32 v{t}, v{v}, v{v}")
        e(f"v_and_b32 v{v}, s24, v{t}")
        e(f"v_sqrt_f32 v{v}, v{v}")
        e("s_nop 0")
        e(f"v_cvt_pk_bf16_f32 v{t}, v{v}, v{v}")
        e(f"v_and_b32 v{v}, s24, v{t}")
        e(f"v_rcp_f32 v{v}, v{v}")
        e("s_nop 0")
        for i in range(NL):
            a0 = fl(r, i, 0); a1 = fl(r, i, 1)
            e(f"v_sub_f32 v{a0}, v{a0}, v{m}"); e(f"v_sub_f32 v{a1}, v{a1}, v{m}")
            e(f"v_cvt_pk_bf16_f32 v{t}, v{a0}, v{a1}")
            e(f"v_lshlrev_b32 v{a0}, 16, v{t}"); e(f"v_and_b32 v{a1}, s24, v{t}")
            e(f"v_mul_f32 v{a0}, v{a0}, v{v}"); e(f"v_mul_f32 v{a1}, v{a1}, v{v}")
            e(f"v_cvt_pk_bf16_f32 v{dr(r,i)}, v{a0}, v{a1}")
        e(f"s_add_u32 s22, s21, {r}")
        e(f"s_mul_i32 s22, s22, {ldd*2}")
        for i in range(NL):
            if i == NL - 1 and rem < 64:
                e("s_mov_b64 exec, s[26:27]")
            e(f"buffer_store_dword v{dr(r,i)}, v3, s[8:11], s22 offen offset:{i*256}")
            if i == NL - 1 and rem < 64:
                e("s_mov_b64 exec, -1")
    a.label(f"{name}_done")
    e("s_endpgm")
    return kernel_desc(name, X + 16, 0, 40), (nwg, 256, 0)
```

```python
import sys
from asmlib import *
from attn import gen_attn
from gemm import gen_gemm
from ln import gen_ln

HEADER = open("recurrent_scan__mha_block_cached__mixer_gmlp__prompt.s.ref").read().split("; Override launch")[0]

def build(out_path):
    a = Asm()
    ks = []
    XN = ('ws', WS_XN); XNB = 2048 * 640 * 2
    ZB = 2048 * 1728 * 2; Z2B = 2048 * 864 * 2
    ks.append(("ln1_kernel",) + gen_ln(a, "ln1_kernel", ('in', 0), XNB, 0, 640, 640, XN, XNB, 640))
    ks.append(("qp_kernel",) + gen_gemm(a, "qp_kernel", 2048, 4096, 640, 640, 4096, XN, XNB, ('in', 3), 640*4096*2, ('ws', WS_Q), 16 << 20, 4096, 'q'))
    ks.append(("win_kernel",) + gen_gemm(a, "win_kernel", 2048, 1728, 640, 640, 1728, XN, XNB, ('in', 6), 640*1728*2, ('ws', WS_Z), ZB, 1728, 'gelu', Mt=128, Nt=64, WM=4, WN=1))
    ks.append(("ln2_kernel",) + gen_ln(a, "ln2_kernel", ('ws', WS_Z), ZB, 864, 1728, 864, ('ws', WS_Z2N), Z2B, 864))
    ks.append(("attn_kernel",) + gen_attn(a, 2))
    ks.append(("sp_kernel",) + gen_gemm(a, "sp_kernel", 2048, 864, 2048, 2048, 864, ('in', 7), 2048*2048*2, ('ws', WS_Z2N), Z2B, ('ws', WS_T), Z2B, 864, 'sp', Mt=128, Nt=64, WM=4, WN=1, NST=4,
                                        aux=[(('ws', WS_Z), ZB, 1728), (('in', 8), 4096, 0)]))
    ks.append(("wo_kernel",) + gen_gemm(a, "wo_kernel", 2048, 640, 4096, 4096, 640, ('ws', WS_O), 16 << 20, ('in', 4), 4096*640*2, ('ws', WS_S), XNB, 640, 'plain', Mt=128, Nt=64, WM=4, WN=1, NST=4))
    ks.append(("fin_kernel",) + gen_gemm(a, "fin_kernel", 2048, 640, 864, 864, 640, ('ws', WS_T), Z2B, ('in', 9), 864*640*2, ('in', 10), XNB, 640, 'final', Mt=128, Nt=64, WM=4, WN=1,
                                         aux=[(('ws', WS_S), XNB, 640), (('in', 0), XNB, 640)]))
    out = HEADER
    for (n, d, (g, b, l)) in ks:
        out += f"; @launch kernel={n} grid=({g},1,1) block=({b},1,1) lds={l}\n"
    out += '.amdgcn_target "amdgcn-amd-amdhsa--gfx950"\n.text\n' + a.text()
    out += '.section .rodata,"a"\n.p2align 6\n'
    for (n, d, _) in ks: out += ".p2align 6\n" + d
    open(out_path, "w").write(out)

if __name__ == "__main__":
    build(sys.argv[1] if len(sys.argv) > 1 else "recurrent_scan__mha_block_cached__mixer_gmlp__prompt.s")
```

```python
from asmlib import *
from gemm import f32hex
from ln2 import ln_math
import math

class VM:
    def __init__(self): self.ops = []
    def add(self, tag, n=1): self.ops += [tag] * n
    def wait(self, *tags):
        last = max(i for i, t in enumerate(self.ops) if t in tags)
        n = len(self.ops) - 1 - last
        assert n <= 63
        return n

def gen_attn2(a, name="attn_kernel", THR_LOG2=20, stamp=False):
    NB = 2; NW = 4; NPW = 4
    KADDR = 8; VADDR = 16; KDMA = 20; VDMA = 24; L = 25; BS = 27; E = 28
    SB = 32
    def S(buf, b): return SB + (buf * NB + b) * 16
    CIB = SB + 2 * NB * 16
    def CI(b): return CIB + 16 * b
    PB = CIB + 16 * NB
    def P(buf, b): return PB + (buf * NB + b) * 8
    X0 = PB + 16 * NB
    WDMA = X0; WADDR = X0 + 4; XOFF = X0 + 8; T = X0 + 12
    LNB = T + 8
    def O(b, db): return (b * 4 + db) * 16
    QB = 128
    def Q(b, s): return QB + (b * 8 + s) * 4
    KFB = 192
    def KF(s): return KFB + 4 * s
    VFB = 224
    def VF(db, ks): return VFB + (db * 2 + ks) * 4
    NA = 256
    def QA(b, db): return SB + (b * 4 + db) * 16
    def XF(buf, b, ks): return buf * 32 + (b * 4 + ks) * 4
    def WF(buf, db): return KFB + buf * 16 + db * 4
    sK, sV, sX, sO, sWQ, sZ, sZN = 4, 8, 12, 16, 36, 40, 44
    sW, sM0, sKT, sVT, sIT, sTHR, sHEAD, sQB, sT, sT2, sWT, sB1 = 20, 21, 22, 23, 30, 31, 32, 33, 34, 35, 48, 49
    VBASE = 65536; WBASE = 98304
    slow_blocks = []
    vm = VM()
    kernel_header(a, name)
    e = a.e
    e("s_cmp_ge_u32 s2, 256")
    e(f"s_cbranch_scc1 {name}_done")
    if stamp:
        e("s_memtime s[60:61]"); e("s_memrealtime s[62:63]"); e("s_load_dwordx2 s[76:77], s[0:1], 88")
    e("s_load_dwordx4 s[24:27], s[0:1], 8")
    e("s_load_dwordx2 s[28:29], s[0:1], 96")
    e(f"s_load_dwordx2 s[{sWQ}:{sWQ+1}], s[0:1], 24")
    e(f"s_and_b32 s{sT}, s2, 7")
    e(f"s_lshl_b32 s{sT}, s{sT}, 2")
    e(f"s_lshr_b32 s{sHEAD}, s2, 6")
    e(f"s_add_u32 s{sHEAD}, s{sHEAD}, s{sT}")
    e(f"s_lshr_b32 s{sQB}, s2, 3")
    e(f"s_and_b32 s{sQB}, s{sQB}, 7")
    e("v_lshrrev_b32 v1, 6, v0")
    e("v_and_b32 v2, 63, v0")
    e("s_nop 0")
    e(f"v_readfirstlane_b32 s{sW}, v1")
    e(f"s_lshl_b32 s{sT}, s{sHEAD}, 19")
    e("s_waitcnt lgkmcnt(0)")
    make_srd(a, sK, 24, 25, 524288, f"s{sT}")
    make_srd(a, sV, 26, 27, 524288, f"s{sT}")
    make_srd(a, sX, 28, 29, 2048 * 640 * 2, WS_XN if WS_XN else None)
    make_srd(a, sO, 28, 29, 16 << 20, WS_O)
    make_srd(a, sZ, 28, 29, 2048 * 1728 * 2, WS_Z)
    make_srd(a, sZN, 28, 29, 2048 * 864 * 2, WS_Z2N)
    e(f"s_mov_b32 s{sWQ+2}, {640*4096*2}")
    e(f"s_mov_b32 s{sWQ+3}, 0x20000")
    LD = LNB if LNB % 4 == 0 else LNB + (4 - LNB % 4)
    LF = LD + 16; LX = LF + 32
    NV = LX + 8
    e(f"s_lshl_b32 s{sT}, s2, 3")
    e(f"s_lshl_b32 s{sT2}, s{sW}, 1")
    e(f"s_add_u32 s50, s{sT}, s{sT2}")
    e("v_and_b32 v3, 1, v2")
    e("v_add_u32 v3, s50, v3")
    e("v_lshrrev_b32 v5, 1, v2")
    e("v_lshrrev_b32 v6, 5, v3")
    e(f"s_mov_b32 s{sT}, {108*1024}")
    e(f"v_mul_lo_u32 v6, v6, s{sT}")
    e("v_lshrrev_b32 v7, 1, v5")
    e("v_lshl_add_u32 v6, v7, 10, v6")
    e("v_and_b32 v7, 1, v5")
    e("v_lshl_add_u32 v6, v7, 9, v6")
    e("v_and_b32 v7, 31, v3")
    e("v_lshl_add_u32 v6, v7, 4, v6")
    for i in range(4):
        e(f"s_mov_b32 s{sT}, {(54+16*i)*1024}")
        e(f"buffer_load_dwordx4 {vr(LD+4*i,4)}, v6, {sr(sZ,4)}, s{sT} offen")
        vm.add("z")
    e(f"s_mov_b32 s{sT}, 1728")
    e(f"v_mul_lo_u32 v3, v3, s{sT}")
    e("v_lshl_add_u32 v3, v5, 4, v3")
    e("v_cmp_gt_u32 s[54:55], 12, v5")
    e(f"s_mul_i32 s{sM0}, s{sW}, {NPW*1024}")
    e(f"s_mov_b32 s{sTHR}, {hex((127 + THR_LOG2) << 23)}")
    e(f"s_lshl_b32 s{sT}, s{sQB}, 8")
    e(f"s_lshl_b32 s{sT2}, s{sW}, 6")
    e(f"s_add_u32 s51, s{sT}, s{sT2}")
    e("v_lshrrev_b32 v4, 5, v2")
    e(f"v_lshlrev_b32 v{XOFF}, 4, v2")
    e(f"s_lshr_b32 s{sT}, s51, 5")
    e(f"s_mul_i32 s57, s{sT}, 40960")
    e(f"s_add_u32 s{sB1}, s57, 40960")
    def xload(t):
        r = []
        for b in range(2):
            for ks in range(4):
                so = "s57" if b == 0 else f"s{sB1}"
                r.append(f"buffer_load_dwordx4 {ar(XF(t%4,b,ks),4)}, v{XOFF}, {sr(sX,4)}, {so} offen offset:{ks*1024}")
        r += ["s_add_u32 s57, s57, 4096", f"s_add_u32 s{sB1}, s{sB1}, 4096"]
        return r
    e("v_lshrrev_b32 v5, 4, v2")
    e("v_and_b32 v6, 15, v2")
    e(f"s_lshl_b32 s{sT}, s{sW}, 4")
    e(f"v_add_u32 v7, s{sT}, v5")
    for i in range(NPW):
        e(f"v_add_u32 v1, {4*i}, v7")
        e("v_and_b32 v1, 15, v1")
        e("v_xor_b32 v1, v1, v6")
        e("v_lshlrev_b32 v1, 4, v1")
        e(f"v_lshl_add_u32 v{KDMA+i}, v7, 8, v1")
    e("v_lshlrev_b32 v1, 2, v5")
    e("v_xor_b32 v1, v1, v6")
    e("v_lshlrev_b32 v1, 4, v1")
    e(f"v_lshl_add_u32 v{VDMA}, v7, 8, v1")
    e(f"s_lshl_b32 s{sT}, s{sHEAD}, 8")
    e(f"v_add_u32 v1, s{sT}, v1")
    e("v_lshl_add_u32 v1, v7, 13, v1")
    for i in range(NPW):
        e(f"v_add_u32 v{WDMA+i}, {i*(4*8192-1024)}, v1")
    e(f"s_mov_b32 s{sKT}, 0"); e(f"s_mov_b32 s{sVT}, 0"); e(f"s_mov_b32 s{sWT}, 0")
    def dma_k(stage):
        r = [f"s_add_u32 m0, s{sM0}, {stage*16384}", "s_nop 0"]
        for i in range(NPW):
            r.append(f"buffer_load_dwordx4 v{KDMA+i}, {sr(sK,4)}, s{sKT} offen offset:{i*1024} lds")
        r.append(f"s_add_u32 s{sKT}, s{sKT}, 16384")
        return r
    def dma_v(stage):
        r = [f"s_add_u32 m0, s{sM0}, {VBASE + stage*16384}", "s_nop 0"]
        for i in range(NPW):
            r.append(f"buffer_load_dwordx4 v{VDMA}, {sr(sV,4)}, s{sVT} offen offset:{i*1024} lds")
        r.append(f"s_add_u32 s{sVT}, s{sVT}, 16384")
        return r
    def dma_w(t):
        r = [f"s_add_u32 m0, s{sM0}, {WBASE + (t%4)*16384}", "s_nop 0"]
        for i in range(NPW):
            r.append(f"buffer_load_dwordx4 v{WDMA+i}, {sr(sWQ,4)}, s{sWT} offen offset:{i*1024} lds")
        r.append(f"s_add_u32 s{sWT}, s{sWT}, {64*8192}")
        return r
    def issue(lst, tag):
        for i in lst:
            if i.startswith("buffer_"): vm.add(tag)
        return lst
    a.many(issue(xload(0), "x0")); a.many(issue(dma_w(0), "w0"))
    a.many(issue(xload(1), "x1")); a.many(issue(dma_w(1), "w1"))
    a.many(issue(dma_k(0), "k0")); a.many(issue(dma_k(1), "k1"))
    a.many(issue(xload(2), "x2")); a.many(issue(dma_w(2), "w2")); a.many(issue(dma_w(3), "w3"))
    e("v_and_b32 v1, 31, v2")
    e("v_and_b32 v5, 15, v2")
    for s in range(8):
        e(f"v_add_u32 v6, {2*s}, v4")
        e("v_xor_b32 v6, v6, v5")
        e("v_lshlrev_b32 v6, 4, v6")
        e(f"v_lshl_add_u32 v{KADDR+s}, v1, 8, v6")
    e("v_lshrrev_b32 v6, 2, v5")
    e("v_lshl_add_u32 v7, v4, 2, v6")
    e("v_lshlrev_b32 v7, 8, v7")
    e("v_and_b32 v1, 3, v2")
    e("v_lshl_add_u32 v7, v1, 3, v7")
    e("v_bfe_u32 v1, v2, 4, 1")
    e("v_lshl_add_u32 v7, v1, 5, v7")
    e(f"v_add_u32 v7, {VBASE}, v7")
    for db in range(4):
        e(f"v_xor_b32 v1, {db}, v6")
        e(f"v_lshl_add_u32 v{VADDR+db}, v1, 6, v7")
    e("v_lshl_add_u32 v7, v4, 3, v6")
    e("v_lshlrev_b32 v7, 8, v7")
    e("v_and_b32 v1, 1, v2")
    e("v_lshl_add_u32 v7, v1, 4, v7")
    e("v_bfe_u32 v1, v2, 1, 1")
    e("v_lshl_add_u32 v7, v1, 3, v7")
    e("v_bfe_u32 v1, v2, 4, 1")
    e("v_lshl_add_u32 v7, v1, 5, v7")
    e(f"v_add_u32 v7, {WBASE}, v7")
    for db in range(4):
        e(f"v_xor_b32 v1, {db}, v6")
        e(f"v_lshl_add_u32 v{WADDR+db}, v1, 6, v7")
    e("s_mov_b32 s52, 0xffff0000")
    e(f"s_waitcnt vmcnt({vm.wait('z')})")
    ln_math(a, LD, LF, LX, 4, 1, 864, "s[54:55]", 52, 53, 56)
    for i in range(4):
        if i == 3: e("s_mov_b64 exec, s[54:55]")
        e(f"buffer_store_dwordx4 {vr(LD+4*i,4)}, v3, {sr(sZN,4)}, 0 offen offset:{i*512}")
        vm.add("zs")
        if i == 3: e("s_mov_b64 exec, -1")
    if stamp: e("s_memtime s[64:65]")
    def wread(buf, t, ks):
        r = []
        for db in range(4):
            off = (t % 4) * 16384 + ks * 4096
            r.append(f"ds_read_b64_tr_b16 {ar(WF(buf,db),2)}, v{WADDR+db} offset:{off}")
            r.append(f"ds_read_b64_tr_b16 {ar(WF(buf,db)+2,2)}, v{WADDR+db} offset:{off+1024}")
        return r
    e(f"s_waitcnt vmcnt({vm.wait('x0','w0')})")
    e("s_barrier")
    a.many(wread(0, 0, 0))
    extra_dma = {0: (dma_v(0), "v0"), 1: (dma_k(2), "k2"), 2: (dma_v(1), "v1"), 3: (dma_k(3), "k3")}
    for t in range(10):
        for ks in range(4):
            buf = ks & 1
            mf = []
            for db in range(4):
                for b in range(2):
                    c = "0" if (t == 0 and ks == 0) else vr(QA(b, db), 16)
                    mf.append(f"v_mfma_f32_32x32x16_bf16 {vr(QA(b,db),16)}, {ar(WF(buf,db),4)}, {ar(XF(t%4,b,ks),4)}, {c}")
            pre = ["s_waitcnt lgkmcnt(0)"]
            fill = []
            if ks < 3:
                fill = wread(1 - buf, t, ks + 1)
                if ks == 0 and t + 3 < 10: fill += issue(xload(t + 3), f"x{t+3}")
                if ks == 1 and t in extra_dma: fill += issue(extra_dma[t][0], extra_dma[t][1])
            elif t < 9:
                pre = [f"s_waitcnt vmcnt({vm.wait(f'x{t+1}', f'w{t+1}')}) lgkmcnt(0)", "s_barrier"]
                fill = wread(0, t + 1, 0)
                if t + 4 < 10: fill += issue(dma_w(t + 4), f"w{t+4}")
            a.many(pre)
            gaps = distribute(fill, 8)
            for g in range(8):
                e(mf[g]); a.many(gaps[g])
    e("s_barrier")
    a.many(issue(dma_v(2), "v2"))
    for r in range(32): e(f"v_accvgpr_write_b32 a{VFB+r}, 0")
    e(f"s_mov_b32 s{sT}, {f32hex(math.log2(math.e) / math.sqrt(128.0))}")
    e("s_nop 7")
    for r in range(128): e(f"v_accvgpr_write_b32 a{r}, 0")
    for b in range(2):
        for db in range(4):
            for u in range(2):
                base = QA(b, db) + 8 * u
                for i in range(8): e(f"v_mul_f32 v{base+i}, s{sT}, v{base+i}")
                for i in range(4): e(f"v_cvt_pk_bf16_f32 v{T+i}, v{base+2*i}, v{base+2*i+1}")
                for i in range(4): e(f"v_accvgpr_write_b32 a{Q(b,2*db+u)+i}, v{T+i}")
    for b in range(NB):
        for r in range(8): e(f"v_mov_b32 v{P(1,b)+r}, 0")
        e(f"v_mov_b32 v{L+b}, 0")
    def kread(s, ht):
        off = ((ht >> 1) % 4) * 16384 + (ht & 1) * 8192
        return f"ds_read_b128 {ar(KF(s),4)}, v{KADDR+s} offset:{off}"
    def vread(db, ks, ht):
        off = ((ht >> 1) % 4) * 16384 + (ht & 1) * 8192 + ks * 4096
        return [f"ds_read_b64_tr_b16 {ar(VF(db,ks),2)}, v{VADDR+db} offset:{off}",
                f"ds_read_b64_tr_b16 {ar(VF(db,ks)+2,2)}, v{VADDR+db} offset:{off+2048}"]
    for s in range(8): e(kread(s, 0))
    e("s_waitcnt lgkmcnt(0)")
    for b in range(NB):
        for s in range(8):
            c = "0" if s == 0 else vr(S(0,b),16)
            e(f"v_mfma_f32_32x32x16_bf16 {vr(S(0,b),16)}, {ar(KF(s),4)}, {ar(Q(b,s),4)}, {c}")
    for s in range(8): e(kread(s, 1))
    e("s_nop 15"); e("s_nop 3")
    def rowmax(dst, tmp, base):
        r = [f"v_max3_f32 v{dst}, v{base}, v{base+1}, v{base+2}"]
        for i in range(3, 15, 2):
            r.append(f"v_max3_f32 v{dst}, v{dst}, v{base+i}, v{base+i+1}")
        r.append(f"v_max_f32 v{dst}, v{dst}, v{base+15}")
        r += [f"v_mov_b32 v{tmp}, v{dst}", "s_nop 1", f"v_permlane32_swap_b32 v{tmp}, v{dst}", "s_nop 1",
              f"v_max_f32 v{dst}, v{dst}, v{tmp}"]
        return r
    for b in range(NB):
        a.many(rowmax(E, E+1, S(0,b)))
        for r in range(16):
            e(f"v_sub_f32 v{CI(b)+r}, 0, v{E}")
            e(f"v_sub_f32 v{S(0,b)+r}, v{S(0,b)+r}, v{E}")
    e(f"s_mov_b32 s{sIT}, 0")
    e("s_waitcnt lgkmcnt(0)")
    e("s_nop 1")

    def sm_list(p, b):
        sb = S(p, b); pb = P(p, b)
        def ea(q): return E + 2 * (q % 2)
        def eb(q): return E + 2 * (q % 2) + 1
        r = [f"v_exp_f32 v{ea(0)}, v{sb}", f"v_exp_f32 v{eb(0)}, v{sb+1}"]
        for q in range(1, 9):
            pq = q - 1
            if q < 8: r.append(f"v_exp_f32 v{ea(q)}, v{sb+2*q}")
            if pq == 0:
                r.append(f"v_add_f32 v{BS}, v{ea(0)}, v{eb(0)}")
            else:
                r.append(f"v_add_f32 v{BS}, v{BS}, v{ea(pq)}")
                r.append(f"v_add_f32 v{BS}, v{BS}, v{eb(pq)}")
            if q < 8: r.append(f"v_exp_f32 v{eb(q)}, v{sb+2*q+1}")
            r.append(f"v_cvt_pk_bf16_f32 v{pb+pq}, v{ea(pq)}, v{eb(pq)}")
        return r
    def slow(lbl, ret, p, b):
        r = [lbl + ":"]
        x = ["s_nop 15", "s_nop 15"]
        x += rowmax(E, E+1, S(p, b))
        x += [f"v_ceil_f32 v{E}, v{E}", f"v_max_f32 v{E}, 0, v{E}",
              f"v_cvt_i32_f32 v{E+1}, v{E}", f"v_sub_u32 v{E+1}, 0, v{E+1}",
              f"v_ldexp_f32 v{E+1}, 1.0, v{E+1}"]
        for rr in range(64):
            x += [f"v_accvgpr_read_b32 v{E+2}, a{O(b,0)+rr}", f"v_mul_f32 v{E+2}, v{E+2}, v{E+1}",
                  f"v_accvgpr_write_b32 a{O(b,0)+rr}, v{E+2}"]
        x.append(f"v_mul_f32 v{L+b}, v{L+b}, v{E+1}")
        for rr in range(16):
            x += [f"v_sub_f32 v{CI(b)+rr}, v{CI(b)+rr}, v{E}", f"v_sub_f32 v{S(p,b)+rr}, v{S(p,b)+rr}, v{E}",
                  f"v_sub_f32 v{S(1-p,b)+rr}, v{S(1-p,b)+rr}, v{E}"]
        x += sm_list(p, b)
        x += ["s_nop 1", f"s_branch {ret}"]
        return r + ["    " + i for i in x]
    if stamp:
        e("s_memtime s[66:67]"); e("s_waitcnt lgkmcnt(0)")
    a.raw(".p2align 6")
    a.label(f"{name}_loop")
    for uu in range(8):
        p = uu & 1
        a.c(f"==== slot {uu}")
        for b in range(NB):
            mf = []
            for s in range(8):
                c = vr(CI(b),16) if s == 0 else vr(S(1-p,b),16)
                mf.append(f"v_mfma_f32_32x32x16_bf16 {vr(S(1-p,b),16)}, {ar(KF(s),4)}, {ar(Q(b,s),4)}, {c}")
            pv = [(db, ks) for ks in range(2) for db in range(4)]
            for (db, ks) in pv:
                mf.append(f"v_mfma_f32_32x32x16_bf16 {ar(O(b,db),16)}, {ar(VF(db,ks),4)}, {vr(P(1-p,b)+4*ks,4)}, {ar(O(b,db),16)}")
            fixed = {g: [] for g in range(16)}
            tail = {g: [] for g in range(16)}
            if b == NB - 1:
                for s in range(8): fixed[s].append(kread(s, uu + 2))
                for i, (db, ks) in enumerate(pv): fixed[8 + i] += vread(db, ks, uu)
                fixed[10].insert(0, "s_waitcnt lgkmcnt(4)")
            if b == 0:
                if p == 0:
                    tail[7] += [f"s_waitcnt vmcnt({3*NPW}) lgkmcnt(0)", "s_barrier"]
                    d = dma_k((uu >> 1) % 4)
                else:
                    tail[7] += [f"s_waitcnt lgkmcnt(0)"]
                    d = dma_v(((uu >> 1) + 3) % 4)
                fixed[8].append(d[0])
                for i in range(NPW): fixed[9 + i].append(d[2 + i])
                fixed[15].append(d[-1])
            lbl = f"{name}_slow_{uu}_{b}"; ret = f"{name}_ret_{uu}_{b}"
            items = sm_list(p, b)
            chk = [f"v_cmp_lt_f32 vcc, s{sTHR}, v{BS}", f"s_cbranch_vccnz {lbl}", ret + ":", f"v_add_f32 v{L+b}, v{L+b}, v{BS}"]
            if uu == 7 and b == NB - 1:
                chk += [f"s_add_u32 s{sIT}, s{sIT}, 1", f"s_cmp_lt_u32 s{sIT}, 8", f"s_cbranch_scc1 {name}_loop"]
            gaps = distribute(items + ["s_nop 0"] * 3, 16, fixed)
            gaps = [[i for i in g if i != "s_nop 0"] for g in gaps]
            for g in range(16):
                e(mf[g])
                for i in gaps[g]: e(i)
                for i in tail[g]: e(i)
            for i in chk:
                if i.endswith(":"): a.raw(i)
                else: e(i)
            slow_blocks += slow(lbl, ret, p, b)
    if stamp: e("s_memtime s[68:69]")
    e("s_waitcnt lgkmcnt(0)")
    for b in range(NB):
        for ks in range(2):
            for db in range(4):
                e(f"v_mfma_f32_32x32x16_bf16 {ar(O(b,db),16)}, {ar(VF(db,ks),4)}, {vr(P(1,b)+4*ks,4)}, {ar(O(b,db),16)}")
    for b in range(NB):
        e(f"v_mov_b32 v{E}, v{L+b}")
        e("s_nop 1")
        e(f"v_permlane32_swap_b32 v{E}, v{L+b}")
        e("s_nop 1")
        e(f"v_add_f32 v{L+b}, v{L+b}, v{E}")
        e(f"v_rcp_f32 v{L+b}, v{L+b}")
    e(f"s_lshr_b32 s{sT}, s51, 5")
    e(f"s_lshl_b32 s{sT}, s{sT}, 18")
    e(f"s_lshl_b32 s{sT2}, s{sHEAD}, 13")
    e(f"s_add_u32 s{sT}, s{sT}, s{sT2}")
    e("s_nop 7")
    TT = S(0, 0)
    for b in range(NB):
        for db in range(4):
            for gp in range(2):
                t = TT + ((db * 2 + gp) % 4) * 12
                for i in range(8): e(f"v_accvgpr_read_b32 v{t+4+i}, a{O(b,db)+8*gp+i}")
                for i in range(8): e(f"v_mul_f32 v{t+4+i}, v{t+4+i}, v{L+b}")
                for i in range(4): e(f"v_cvt_pk_bf16_f32 v{t+i}, v{t+4+2*i}, v{t+4+2*i+1}")
                e("s_nop 1")
                e(f"v_permlane32_swap_b32 v{t}, v{t+2}")
                e(f"v_permlane32_swap_b32 v{t+1}, v{t+3}")
                k = db * 2 + gp
                if k % 4 == 0: e(f"s_add_u32 s{sT2}, s{sT}, {b*262144 + k*1024}")
                else: e("s_nop 0")
                e(f"buffer_store_dwordx4 {vr(t,4)}, v{XOFF}, {sr(sO,4)}, s{sT2} offen offset:{(k%4)*1024}")
    if stamp:
        e("s_waitcnt vmcnt(0)")
        e("s_memtime s[70:71]"); e("s_memrealtime s[72:73]")
        e("s_waitcnt lgkmcnt(0)")
        e("s_mov_b32 s78, 256"); e("s_mov_b32 s79, 0x20000")
        e(f"s_cmp_lg_u32 s{sW}, 0"); e(f"s_cbranch_scc1 {name}_done")
        e("s_and_b32 s80, s2, 0x3f"); e("s_cmp_lg_u32 s80, 5"); e(f"s_cbranch_scc1 {name}_done")
        e("s_lshr_b32 s80, s2, 6"); e("s_lshl_b32 s80, s80, 6")
        for i in range(14): e(f"v_mov_b32 v{32+i}, s{60+i}")
        e("v_mov_b32 v1, 0")
        e("v_cmp_eq_u32 vcc, 0, v2")
        e("s_and_saveexec_b64 s[82:83], vcc")
        for i in range(4): e(f"buffer_store_dwordx4 v[{32+4*i}:{35+4*i}], v1, s[76:79], s80 offen offset:{16*i}")
        e("s_waitcnt vmcnt(0)")
    a.label(f"{name}_done")
    e("s_endpgm")
    for l in slow_blocks: a.raw(l)
    return kernel_desc(name, NV, NA, 90 if stamp else 60), (256, 256, 163840)
```

```python
from asmlib import *
from gemm import f32hex
import math

LOG2E = math.log2(math.e)
STAMP = {"on": False}
def stamp(a, k):
    if STAMP["on"]:
        a.e(f"s_memtime s[{60+2*k}:{61+2*k}]")
def stamp_out(a, name):
    if not STAMP["on"]: return
    e = a.e
    lbl = a.newlabel(name + "_nost")
    e("s_waitcnt vmcnt(0)")
    e("s_memtime s[68:69]")
    e("s_load_dwordx2 s[76:77], s[0:1], 88")
    e("s_waitcnt lgkmcnt(0)")
    e("s_mov_b32 s78, 256"); e("s_mov_b32 s79, 0x20000")
    e(f"s_cmp_lg_u32 s{G.sW}, 0"); e(f"s_cbranch_scc1 {lbl}")
    e("s_and_b32 s80, s2, 0x3f"); e("s_cmp_lg_u32 s80, 5"); e(f"s_cbranch_scc1 {lbl}")
    e("s_lshr_b32 s80, s2, 6"); e("s_lshl_b32 s80, s80, 6")
    for i in range(12): e(f"v_mov_b32 v{32+i}, s{60+i}")
    e("v_mov_b32 v1, 0")
    e("v_cmp_eq_u32 vcc, 0, v2")
    e("s_and_saveexec_b64 s[82:83], vcc")
    for i in range(3): e(f"buffer_store_dwordx4 v[{32+4*i}:{35+4*i}], v1, s[76:79], s80 offen offset:{16*i}")
    e("s_waitcnt vmcnt(0)")
    a.label(lbl)

class G:
    sA, sB, sC, sX1, sX2 = 4, 8, 12, 16, 20
    sW, sM0, sAK, sBK, sIT, sM, sN, sT, sWM, sWN, sC0, sC1, sC2, sK0, sMB0 = 24, 25, 26, 27, 28, 29, 30, 31, 32, 33, 34, 35, 36, 37, 38

def gemm_body(a, name, N, Kfull, KT, last_nks, lda, ldb, epi, Mt, Nt, WM, WN, NST, amode, PF=3, ksteps_A=None, ldc=None, ldx=None, nsplit=1):
    g = G
    NW = WM * WN
    MB = Mt // WM // 32
    NBk = Nt // WN // 32
    ABYTES = Mt * 128 if amode == 'lds' else 0
    BBYTES = 64 * Nt * 2
    PA = Mt // 8 // NW if amode == 'lds' else 0
    PB = BBYTES // 1024 // NW
    assert PA <= 4 and 1 <= PB <= 4
    AFL = MB * 4 if amode == 'frag' else 0
    BROW = Nt * 2
    assert Nt in (64, 128)
    RPP = 1024 // BROW
    lds = (ABYTES + BBYTES) * NST
    assert NST * ABYTES <= 65536 and NST * BBYTES <= 65536
    AAD = 8; BAD = 12; ADM = 16; BDM = 20; VC = 24; VX = 25; VA = 26; T0 = 28
    ACC = 64
    def acc(mb, nb): return ACC + (mb * NBk + nb) * 16
    FR = ACC + MB * NBk * 16
    FA = MB if amode == 'lds' else 0
    def fa(buf, mb): return FR + buf * (FA + NBk) * 4 + mb * 4
    def fb(buf, nb): return FR + buf * (FA + NBk) * 4 + FA * 4 + nb * 4
    NV = FR + 2 * (FA + NBk) * 4
    NPF = PF + 1
    def xf(t, mb, ks): return ((t % NPF) * MB + mb) * 16 + ks * 4
    NA = NPF * MB * 16 if amode == 'frag' else 0
    sA, sB, sC, sX1, sX2 = g.sA, g.sB, g.sC, g.sX1, g.sX2
    sW, sM0, sAK, sBK, sIT, sM, sN, sT, sWM, sWN, sC0, sC1, sC2, sK0, sMB0 = g.sW, g.sM0, g.sAK, g.sBK, g.sIT, g.sM, g.sN, g.sT, g.sWM, g.sWN, g.sC0, g.sC1, g.sC2, g.sK0, g.sMB0
    e = a.e
    stamp(a, 0)
    e(f"s_and_b32 s{sWN}, s{sW}, {WN-1}")
    e(f"s_lshr_b32 s{sWM}, s{sW}, {WN.bit_length()-1}")
    e(f"s_lshr_b32 s{sMB0}, s{sM}, 5")
    e(f"s_mul_i32 s{sT}, s{sWM}, {MB}")
    e(f"s_add_u32 s{sMB0}, s{sMB0}, s{sT}")
    if amode == 'lds':
        e("v_lshrrev_b32 v3, 3, v2")
        e("v_and_b32 v4, 7, v2")
        e(f"s_mul_i32 s{sT}, s{sW}, {8*PA}")
        e(f"v_add_u32 v3, s{sT}, v3")
        e(f"s_mov_b32 s{sC0}, {lda*2}")
        for i in range(PA):
            e(f"v_add_u32 v5, {8*i}, v3")
            e("v_bfe_u32 v6, v5, 1, 3")
            e("v_xor_b32 v6, v6, v4")
            e(f"v_add_u32 v5, s{sM}, v5")
            e(f"v_mul_lo_u32 v5, v5, s{sC0}")
            e("v_lshl_add_u32 v5, v6, 4, v5")
            if i: e(f"v_subrev_u32 v5, {1024*i}, v5")
            e(f"v_mov_b32 v{ADM+i}, v5")
        e(f"s_lshl_b32 s{sAK}, s{sK0}, 7")
    else:
        for mb in range(MB):
            e(f"v_lshlrev_b32 v{ADM+mb}, 4, v2")
            if mb: e(f"v_add_u32 v{ADM+mb}, {mb*ksteps_A*1024}, v{ADM+mb}")
        e(f"s_mul_i32 s{sAK}, s{sMB0}, {ksteps_A*1024}")
        e(f"s_lshl_b32 s{sT}, s{sK0}, 12")
        e(f"s_add_u32 s{sAK}, s{sAK}, s{sT}")
    CPR = 64 // RPP
    lgc = CPR.bit_length() - 1
    e(f"v_lshrrev_b32 v3, {lgc}, v2")
    e(f"v_and_b32 v4, {CPR-1}, v2")
    e(f"s_mul_i32 s{sT}, s{sW}, {RPP*PB}")
    e(f"v_add_u32 v3, s{sT}, v3")
    e(f"s_mov_b32 s{sC0}, {ldb*2}")
    e(f"s_lshl_b32 s{sC1}, s{sN}, 1")
    for i in range(PB):
        e(f"v_add_u32 v5, {RPP*i}, v3")
        if Nt == 128: e("v_and_b32 v6, 3, v5")
        else: e("v_bfe_u32 v6, v5, 1, 1")
        e("v_lshlrev_b32 v6, 2, v6")
        e("v_xor_b32 v6, v6, v4")
        e(f"v_mul_lo_u32 v5, v5, s{sC0}")
        e("v_lshl_add_u32 v5, v6, 4, v5")
        e(f"v_add_u32 v5, s{sC1}, v5")
        if i: e(f"v_subrev_u32 v5, {1024*i}, v5")
        e(f"v_mov_b32 v{BDM+i}, v5")
    e(f"s_mul_i32 s{sM0}, s{sW}, {PA*1024}")
    e(f"s_mul_i32 s{sC2}, s{sW}, {PB*1024}")
    e(f"s_mul_i32 s{sBK}, s{sK0}, {64*ldb*2}")
    def dma(stage):
        r = []
        if amode == 'lds':
            r += [f"s_add_u32 m0, s{sM0}, {stage*ABYTES}", "s_nop 0"]
            for i in range(PA):
                r.append(f"buffer_load_dwordx4 v{ADM+i}, {sr(sA,4)}, s{sAK} offen offset:{i*1024} lds")
            r.append(f"s_add_u32 m0, s{sC2}, {NST*ABYTES+stage*BBYTES}")
            r.append(f"s_add_u32 s{sAK}, s{sAK}, 128")
        else:
            r += [f"s_add_u32 m0, s{sC2}, {stage*BBYTES}", "s_nop 0"]
        for i in range(PB):
            r.append(f"buffer_load_dwordx4 v{BDM+i}, {sr(sB,4)}, s{sBK} offen offset:{i*1024} lds")
        r.append(f"s_add_u32 s{sBK}, s{sBK}, {64*ldb*2}")
        return r
    def aload(t):
        r = []
        for mb in range(MB):
            for ks in range(4):
                r.append(f"buffer_load_dwordx4 {ar(xf(t,mb,ks),4)}, v{ADM+mb}, {sr(sA,4)}, s{sAK} offen offset:{ks*1024}")
        r.append(f"s_add_u32 s{sAK}, s{sAK}, 4096")
        return r
    seq = []
    def issue(lst, tag):
        for i in lst:
            if i.startswith("buffer_"): seq.append(tag)
        return lst
    def vmwait(*tags):
        idx = [i for i, t in enumerate(seq) if t in tags]
        if not idx: return None
        n = len(seq) - 1 - max(idx)
        assert n <= 63
        return n
    for t in range(max(NST, PF)):
        if amode == 'frag' and t < PF and t < KT: a.many(issue(aload(t), f"a{t}"))
        if t < NST and t < KT: a.many(issue(dma(t), f"d{t}"))
    e("v_and_b32 v3, 31, v2")
    e("v_lshrrev_b32 v4, 5, v2")
    if amode == 'lds':
        e("v_bfe_u32 v5, v3, 1, 3")
        e(f"s_mul_i32 s{sT}, s{sWM}, {MB*32*128}")
        for ks in range(4):
            e(f"v_add_u32 v6, {2*ks}, v4")
            e("v_xor_b32 v6, v6, v5")
            e("v_lshlrev_b32 v6, 4, v6")
            e("v_lshl_add_u32 v6, v3, 7, v6")
            e(f"v_add_u32 v{AAD+ks}, s{sT}, v6")
    e("v_bfe_u32 v5, v2, 2, 2")
    e("v_lshl_add_u32 v6, v4, 3, v5")
    e(f"v_mul_u32_u24 v6, {BROW}, v6")
    e("v_and_b32 v7, 3, v2")
    e("v_lshl_add_u32 v6, v7, 3, v6")
    e("v_bfe_u32 v7, v2, 4, 1")
    e("v_lshl_add_u32 v6, v7, 5, v6")
    if ABYTES: e(f"v_add_u32 v6, {NST*ABYTES}, v6")
    if Nt == 64: e("v_lshrrev_b32 v5, 1, v5")
    e(f"s_mul_i32 s{sT}, s{sWN}, {NBk}")
    for nb in range(NBk):
        e(f"s_add_u32 s{sC0}, s{sT}, {nb}")
        e(f"v_xor_b32 v7, s{sC0}, v5")
        e(f"v_lshl_add_u32 v{BAD+nb}, v7, 6, v6")
    for r in range(MB * NBk * 16): e(f"v_mov_b32 v{ACC+r}, 0")
    def reads(buf, stage, ks):
        r = []
        if amode == 'lds':
            for mb in range(MB):
                r.append(f"ds_read_b128 {vr(fa(buf,mb),4)}, v{AAD+ks} offset:{stage*ABYTES + mb*4096}")
        for nb in range(NBk):
            off = stage * BBYTES + ks * 16 * BROW
            r.append(f"ds_read_b64_tr_b16 {vr(fb(buf,nb),2)}, v{BAD+nb} offset:{off}")
            r.append(f"ds_read_b64_tr_b16 {vr(fb(buf,nb)+2,2)}, v{BAD+nb} offset:{off+4*BROW}")
        return r
    e(f"s_waitcnt vmcnt({vmwait('a0','d0')})")
    e("s_barrier")
    stamp(a, 1)
    a.many(reads(0, 0, 0))
    vq = []
    def enqueue(lst, tag):
        cur = []
        for ins in lst:
            if ins == "s_nop 0": continue
            cur.append(ins)
            if ins.startswith("buffer_"):
                vq.append((cur, tag)); cur = []
        if cur: vq[-1][0].extend(cur)
    def tile_code(kt):
        stage = kt % NST
        is_last = kt == KT - 1
        nks = last_nks if is_last else 4
        if amode == 'frag' and kt + PF < KT: enqueue(aload(kt + PF), f"a{kt+PF}")
        for ks in range(nks):
            buf = ks & 1
            mf = []
            for mb in range(MB):
                for nb in range(NBk):
                    bop = vr(fa(buf, mb), 4) if amode == 'lds' else ar(xf(kt, mb, ks), 4)
                    mf.append(f"v_mfma_f32_32x32x16_bf16 {vr(acc(mb,nb),16)}, {vr(fb(buf,nb),4)}, {bop}, {vr(acc(mb,nb),16)}")
            pre = ["s_waitcnt lgkmcnt(0)"]
            rd = []
            if ks < nks - 1:
                rd = reads(1 - buf, stage, ks + 1)
                phases_left = 3 - ks
            elif not is_last:
                assert not vq
                pre = [f"s_waitcnt vmcnt({vmwait(f'a{kt+1}', f'd{kt+1}')}) lgkmcnt(0)", "s_barrier"]
                rd = reads(0, (kt + 1) % NST, 0)
                if kt + NST < KT: enqueue(dma(stage), f"d{kt+NST}")
                phases_left = 4
            else:
                phases_left = 1
            ng = len(mf)
            take = -(-len(vq) // phases_left) if vq else 0
            take = min(take, len(vq))
            grp = [vq.pop(0) for _ in range(take)]
            gaps = [[] for _ in range(ng)]
            for i, r in enumerate(rd): gaps[min(i * ng // max(len(rd), 1) // 2 if len(rd) > ng else i, ng - 1)].append(r)
            load = [len(g_) for g_ in gaps]
            pos = []
            for _ in range(take):
                gi_ = min(range(ng), key=lambda q: (load[q], -q))
                load[gi_] += 4
                pos.append(gi_)
            pos.sort()
            a.many(pre)
            gi_groups = {}
            for p_, gr in zip(pos, grp): gi_groups.setdefault(min(p_, ng - 1), []).append(gr)
            for gi in range(ng):
                e(mf[gi]); a.many(gaps[gi])
                for (ins_list, tag) in gi_groups.get(gi, []):
                    for k_, ins in enumerate(ins_list):
                        if ins.startswith("buffer_"):
                            seq.append(tag)
                            if k_ > 0 and "m0" in ins_list[k_-1] and ins.endswith("lds"): e("s_nop 0")
                        e(ins)
    per = NST if amode == 'lds' else (NST * NPF // math.gcd(NST, NPF))
    lookahead = max(NST, PF)
    G_ = (KT - lookahead) // per if KT > 16 else 0
    if G_ >= 2:
        marks = len(a.lines)
        e(f"s_mov_b32 s{sIT}, 0")
        a.raw(".p2align 6")
        a.label(f"{name}_loop")
        l0 = len(a.lines)
        for kt in range(per): tile_code(kt)
        body1 = a.lines[l0:]
        sv = len(a.lines)
        for kt in range(per, 2 * per): tile_code(kt)
        body2 = a.lines[sv:]
        del a.lines[sv:]
        if body1 != body2:
            del a.lines[marks:]
            for l in body1: a.lines.append(l)
            e(f"s_mov_b32 s{sIT}, 1")
            a.raw(".p2align 6")
            a.label(f"{name}_loop")
            for l in body2: a.lines.append(l)
            sv2 = len(a.lines)
            for kt in range(2 * per, 3 * per): tile_code(kt)
            assert a.lines[sv2:] == body2, "not steady"
            del a.lines[sv2:]
            done = 3
        else:
            done = 2
        e(f"s_add_u32 s{sIT}, s{sIT}, 1")
        e(f"s_cmp_lt_u32 s{sIT}, {G_}")
        e(f"s_cbranch_scc1 {name}_loop")
        sv = len(a.lines)
        for kt in range(done * per, G_ * per): tile_code(kt)
        del a.lines[sv:]
        start = G_ * per
        assert G_ >= done
    else:
        start = 0
    for kt in range(start, KT): tile_code(kt)
    stamp(a, 2)
    e("s_nop 15")
    e(f"s_mul_i32 s{sT}, s{sWN}, {NBk*32}")
    e(f"s_add_u32 s{sN}, s{sN}, s{sT}")
    e(f"v_lshlrev_b32 v{VA}, 4, v2")
    e(f"s_mov_b32 s{sBK}, 0xffff0000")
    kind = epi
    def rnd(dst0, dst1, a0, a1, tmp):
        return [f"v_cvt_pk_bf16_f32 v{tmp}, v{a0}, v{a1}", f"v_lshlrev_b32 v{dst0}, 16, v{tmp}", f"v_and_b32 v{dst1}, s{sBK}, v{tmp}"]
    if kind == 'gelu':
        e(f"s_mov_b32 s{sC2}, {f32hex(0.044715)}")
        e(f"s_mov_b32 s{sAK}, {f32hex(-2.0 * math.sqrt(2.0 / math.pi) * LOG2E)}")
    if kind == 'final':
        e(f"s_mov_b32 s{sC2}, {f32hex(-LOG2E)}")
        e(f"s_lshl_b32 s{sT}, s{sMB0}, 5")
        e(f"v_add_u32 v3, s{sT}, v3")
        e(f"s_mov_b32 s{sC0}, {ldc*2}")
        e(f"v_mul_lo_u32 v{VC}, v3, s{sC0}")
        e(f"v_lshl_add_u32 v{VC}, v4, 4, v{VC}")
        e(f"s_lshl_b32 s{sC1}, s{sN}, 1")
        e(f"v_add_u32 v{VC}, s{sC1}, v{VC}")
    if kind == 'sp':
        e(f"s_lshl_b32 s{sT}, s{sMB0}, 5")
        e(f"v_add_u32 v3, s{sT}, v3")
        e("v_lshlrev_b32 v5, 1, v3")
    TT = T0; X1 = T0 + 4
    for mb in range(MB):
        if kind == 'sp':
            e(f"buffer_load_ushort v6, v5, {sr(sX2,4)}, 0 offen offset:{mb*64}")
        for nb in range(NBk):
            skip = None
            if N % Nt:
                skip = a.newlabel(name + "_skip")
                e(f"s_add_u32 s{sT}, s{sN}, {nb*32}")
                e(f"s_cmp_ge_u32 s{sT}, {N}")
                e(f"s_cbranch_scc1 {skip}")
            A0 = acc(mb, nb)
            if kind == 'part':
                e(f"s_add_u32 s{sT}, s{sMB0}, {mb}")
                e(f"s_mul_i32 s{sT}, s{sT}, 20")
                e(f"s_lshr_b32 s{sC0}, s{sN}, 5")
                e(f"s_add_u32 s{sT}, s{sT}, s{sC0}")
                e(f"s_add_u32 s{sT}, s{sT}, {nb}")
                e(f"s_lshl_b32 s{sT}, s{sT}, 12")
                e(f"s_add_u32 s{sT}, s{sT}, s{sC1}")
                for gq in range(4):
                    e(f"buffer_store_dwordx4 {vr(A0+4*gq,4)}, v{VA}, {sr(sC,4)}, s{sT} offen offset:{gq*1024}")
                if skip: a.label(skip)
                continue
            def fl_off(ks_total, dst):
                e(f"s_add_u32 s{dst}, s{sMB0}, {mb}")
                e(f"s_mul_i32 s{dst}, s{dst}, {ks_total}")
                e(f"s_lshr_b32 s{sC0}, s{sN}, 4")
                e(f"s_add_u32 s{dst}, s{dst}, s{sC0}")
                e(f"s_add_u32 s{dst}, s{dst}, {2*nb}")
                e(f"s_lshl_b32 s{dst}, s{dst}, 10")
            if kind == 'sp':
                fl_off(108, sT)
                for gp in range(2):
                    e(f"buffer_load_dwordx4 {vr(X1+4*gp,4)}, v{VA}, {sr(sX1,4)}, s{sT} offen offset:{gp*1024}")
            if kind == 'final':
                e(f"s_add_u32 s{sT}, s{sMB0}, {mb}")
                e(f"s_mul_i32 s{sT}, s{sT}, 20")
                e(f"s_lshr_b32 s{sC0}, s{sN}, 5")
                e(f"s_add_u32 s{sT}, s{sT}, s{sC0}")
                e(f"s_add_u32 s{sT}, s{sT}, {nb}")
                e(f"s_lshl_b32 s{sT}, s{sT}, 12")
                for gq in range(4):
                    e(f"buffer_load_dwordx4 {vr(X1+4*gq,4)}, v{VA}, {sr(sX1,4)}, s{sT} offen offset:{gq*1024}")
                for sp in range(1, nsplit):
                    e(f"s_add_u32 s{sT}, s{sT}, {2048*640*4}")
                    for gq in range(4):
                        e(f"buffer_load_dwordx4 {vr(X1+16+4*gq,4)}, v{VA}, {sr(sX1,4)}, s{sT} offen offset:{gq*1024}")
                    e("s_waitcnt vmcnt(0)")
                    for r in range(16): e(f"v_add_f32 v{X1+r}, v{X1+r}, v{X1+16+r}")
                e(f"s_mov_b32 s{sT}, {mb*32*ldc*2}")
                for gp in range(2):
                    e(f"buffer_load_dwordx4 {vr(X1+16+4*gp,4)}, v{VC}, {sr(sX2,4)}, s{sT} offen offset:{nb*64+gp*32}")
            if kind == 'sp':
                e("s_waitcnt vmcnt(0)")
                e("v_lshlrev_b32 v7, 16, v6")
            for p in range(8):
                a0 = A0 + 2 * p; a1 = a0 + 1; d = A0 + p
                if kind == 'gelu':
                    a.many(rnd(a0, a1, a0, a1, TT))
                    for (x, t) in ((a0, TT), (a1, TT + 1)):
                        e(f"v_mul_f32 v{t}, v{x}, v{x}")
                        e(f"v_fma_f32 v{t}, v{t}, s{sC2}, 1.0")
                        e(f"v_mul_f32 v{t}, v{t}, v{x}")
                        e(f"v_mul_f32 v{t}, s{sAK}, v{t}")
                        e(f"v_exp_f32 v{t}, v{t}")
                    e("s_nop 0")
                    for (x, t) in ((a0, TT), (a1, TT + 1)):
                        e(f"v_add_f32 v{t}, 1.0, v{t}")
                        e(f"v_rcp_f32 v{t}, v{t}")
                    e("s_nop 0")
                    for (x, t) in ((a0, TT), (a1, TT + 1)):
                        e(f"v_mul_f32 v{x}, v{x}, v{t}")
                elif kind == 'sp':
                    a.many(rnd(a0, a1, a0, a1, TT))
                    e(f"v_add_f32 v{a0}, v{a0}, v7"); e(f"v_add_f32 v{a1}, v{a1}, v7")
                elif kind == 'final':
                    a.many(rnd(a0, a1, a0, a1, TT))
                    for (x, t) in ((a0, TT), (a1, TT + 1)):
                        e(f"v_mul_f32 v{t}, s{sC2}, v{x}")
                        e(f"v_exp_f32 v{t}, v{t}")
                    e("s_nop 0")
                    for (x, t) in ((a0, TT), (a1, TT + 1)):
                        e(f"v_add_f32 v{t}, 1.0, v{t}")
                        e(f"v_rcp_f32 v{t}, v{t}")
                    e("s_nop 0")
                    for (x, t) in ((a0, TT), (a1, TT + 1)):
                        e(f"v_mul_f32 v{x}, v{x}, v{t}")
                    a.many(rnd(a0, a1, a0, a1, TT))
                    a.many(rnd(TT + 2, TT + 3, X1 + 2 * p, X1 + 2 * p + 1, TT))
                    e(f"v_mul_f32 v{a0}, v{a0}, v{TT+2}"); e(f"v_mul_f32 v{a1}, v{a1}, v{TT+3}")
                e(f"v_cvt_pk_bf16_f32 v{d}, v{a0}, v{a1}")
            e("s_nop 1")
            for gp in range(2):
                t = A0 + 4 * gp
                e(f"v_permlane32_swap_b32 v{t}, v{t+2}")
                e(f"v_permlane32_swap_b32 v{t+1}, v{t+3}")
            e("s_nop 1")
            if kind in ('sp', 'final'):
                if kind == 'final': e("s_waitcnt vmcnt(0)")
                XB = X1 if kind == 'sp' else X1 + 16
                op = "v_mul_f32" if kind == 'sp' else "v_add_f32"
                for p in range(8):
                    d = A0 + p
                    e(f"v_lshlrev_b32 v{TT}, 16, v{d}"); e(f"v_and_b32 v{TT+1}, s{sBK}, v{d}")
                    e(f"v_lshlrev_b32 v{TT+2}, 16, v{XB+p}"); e(f"v_and_b32 v{TT+3}, s{sBK}, v{XB+p}")
                    e(f"{op} v{TT}, v{TT}, v{TT+2}"); e(f"{op} v{TT+1}, v{TT+1}, v{TT+3}")
                    e(f"v_cvt_pk_bf16_f32 v{d}, v{TT}, v{TT+1}")
            if kind == 'final':
                e(f"s_mov_b32 s{sT}, {mb*32*ldc*2}")
                for gp in range(2):
                    e(f"buffer_store_dwordx4 {vr(A0+4*gp,4)}, v{VC}, {sr(sC,4)}, s{sT} offen offset:{nb*64+gp*32}")
            else:
                fl_off(108 if kind == 'gelu' else 54, sT)
                for gp in range(2):
                    e(f"buffer_store_dwordx4 {vr(A0+4*gp,4)}, v{VA}, {sr(sC,4)}, s{sT} offen offset:{gp*1024}")
            if skip: a.label(skip)
    stamp(a, 3)
    stamp_out(a, name)
    return NV, NA, lds

def load_srds(a, specs):
    for (d, (kind, val), nb) in specs:
        a.e(f"s_load_dwordx2 s[{d}:{d+1}], s[0:1], {val*8 if kind == 'in' else 96}")
    a.e("v_lshrrev_b32 v1, 6, v0")
    a.e("v_and_b32 v2, 63, v0")
    a.e("s_nop 0")
    a.e(f"v_readfirstlane_b32 s{G.sW}, v1")
    a.e("s_waitcnt lgkmcnt(0)")
    for (d, (kind, val), nb) in specs:
        if kind == 'ws' and val:
            a.e(f"s_add_u32 s{d}, s{d}, {val}")
            a.e(f"s_addc_u32 s{d+1}, s{d+1}, 0")
        a.e(f"s_mov_b32 s{d+2}, {nb}")
        a.e(f"s_mov_b32 s{d+3}, 0x20000")

XNB = 2048 * 640 * 2; ZB = 2048 * 1728 * 2; Z2B = 2048 * 864 * 2

def simple_tile_ids(a, MT, Mt, Nt):
    MPX = MT // 8
    lg = MPX.bit_length() - 1
    e = a.e
    e(f"s_and_b32 s{G.sM}, s2, 7")
    e(f"s_lshl_b32 s{G.sM}, s{G.sM}, {lg}")
    e(f"s_lshr_b32 s{G.sT}, s2, 3")
    e(f"s_and_b32 s{G.sN}, s{G.sT}, {MPX-1}")
    e(f"s_add_u32 s{G.sM}, s{G.sM}, s{G.sN}")
    e(f"s_lshr_b32 s{G.sN}, s{G.sT}, {lg}")
    e(f"s_mul_i32 s{G.sM}, s{G.sM}, {Mt}")
    e(f"s_mul_i32 s{G.sN}, s{G.sN}, {Nt}")
    e(f"s_mov_b32 s{G.sK0}, 0")

def gen_win(a, Mt=128, Nt=128, WM=4, WN=1, NST=4, PF=3):
    name = "win_kernel"
    MT = 2048 // Mt; NT = (1728 + Nt - 1) // Nt
    kernel_header(a, name)
    a.e(f"s_cmp_ge_u32 s2, {MT*NT}"); a.e(f"s_cbranch_scc1 {name}_done")
    load_srds(a, [(G.sA, ('ws', WS_XN), XNB), (G.sB, ('in', 6), 640*1728*2), (G.sC, ('ws', WS_Z), ZB)])
    simple_tile_ids(a, MT, Mt, Nt)
    NV, NA, lds = gemm_body(a, name, 1728, 640, 10, 4, None, 1728, 'gelu', Mt, Nt, WM, WN, NST, 'frag', PF=PF, ksteps_A=40)
    a.label(f"{name}_done"); a.e("s_endpgm")
    return name, kernel_desc(name, NV, NA, 90), (MT * NT, WM * WN * 64, lds)

def gen_fin(a, Mt=128, Nt=64, WM=4, WN=1, NST=4, PF=3, nsplit=3):
    name = "fin_kernel"
    MT = 2048 // Mt; NT = 640 // Nt
    kernel_header(a, name)
    a.e(f"s_cmp_ge_u32 s2, {MT*NT}"); a.e(f"s_cbranch_scc1 {name}_done")
    load_srds(a, [(G.sA, ('ws', WS_T), Z2B), (G.sB, ('in', 9), 864*640*2), (G.sC, ('in', 10), XNB),
                  (G.sX1, ('ws', WS_S), nsplit * 2048 * 640 * 4), (G.sX2, ('in', 0), XNB)])
    simple_tile_ids(a, MT, Mt, Nt)
    NV, NA, lds = gemm_body(a, name, 640, 864, 14, 2, None, 640, 'final', Mt, Nt, WM, WN, NST, 'frag', PF=PF, ksteps_A=54, ldc=640, nsplit=nsplit)
    a.label(f"{name}_done"); a.e("s_endpgm")
    return name, kernel_desc(name, NV, NA, 90), (MT * NT, WM * WN * 64, lds)

def gen_spwo(a, NST_SP=4, NST_WO=4, PF=3):
    name = "spwo_kernel"
    e = a.e
    kernel_header(a, name)
    e("s_cmp_ge_u32 s2, 248"); e(f"s_cbranch_scc1 {name}_done")
    e("s_lshr_b32 s40, s2, 3")
    e("s_and_b32 s41, s2, 7")
    e("s_cmp_lt_u32 s40, 15"); e(f"s_cbranch_scc1 {name}_wo")
    e("s_sub_u32 s40, s40, 15")
    e("s_and_b32 s42, s41, 1")
    e("s_lshl_b32 s43, s42, 2")
    e("s_sub_u32 s44, 16, s43")
    e("s_cmp_ge_u32 s40, s44"); e(f"s_cbranch_scc1 {name}_done")
    load_srds(a, [(G.sA, ('in', 7), 2048*2048*2), (G.sB, ('ws', WS_Z2N), Z2B), (G.sC, ('ws', WS_T), Z2B),
                  (G.sX1, ('ws', WS_Z), ZB), (G.sX2, ('in', 8), 4096)])
    e(f"s_lshr_b32 s{G.sM}, s41, 1")
    e(f"s_lshl_b32 s{G.sM}, s{G.sM}, 2")
    e(f"s_and_b32 s{G.sT}, s40, 3")
    e(f"s_add_u32 s{G.sM}, s{G.sM}, s{G.sT}")
    e(f"s_lshl_b32 s{G.sM}, s{G.sM}, 7")
    e(f"s_lshr_b32 s{G.sN}, s40, 2")
    e(f"s_add_u32 s{G.sN}, s{G.sN}, s43")
    e(f"s_lshl_b32 s{G.sN}, s{G.sN}, 7")
    e(f"s_mov_b32 s{G.sK0}, 0")
    NV1, NA1, lds1 = gemm_body(a, name + "_sp", 864, 2048, 32, 4, 2048, 864, 'sp', 128, 128, 2, 2, NST_SP, 'lds')
    e("s_endpgm")
    a.label(f"{name}_wo")
    load_srds(a, [(G.sA, ('ws', WS_O), 16 << 20), (G.sB, ('in', 4), 4096*640*2), (G.sC, ('ws', WS_S), 3 * 2048 * 640 * 4)])
    e("s_mul_i32 s42, s40, 13")
    e("s_lshr_b32 s42, s42, 6")
    e("s_mul_i32 s43, s42, 5")
    e("s_sub_u32 s43, s40, s43")
    e("s_mul_i32 s45, s41, 3")
    e("s_add_u32 s45, s45, s42")
    e("s_lshr_b32 s42, s45, 3")
    e("s_and_b32 s45, s45, 7")
    e(f"s_lshl_b32 s{G.sM}, s45, 8")
    e(f"s_lshl_b32 s{G.sN}, s43, 7")
    e(f"s_mul_i32 s{G.sK0}, s42, 22")
    e(f"s_mul_i32 s44, s42, {2048*640*4}")
    mark = len(a.lines)
    NV2, NA2, lds2 = gemm_body(a, name + "_wo", 640, 4096, 22, 4, None, 640, 'part', 256, 128, 4, 1, NST_WO, 'frag', PF=PF, ksteps_A=256)
    for i in range(len(a.lines) - 1, mark, -1):
        if a.lines[i].strip() == "s_nop 15":
            a.lines.insert(i + 1, f"    s_mov_b32 s{G.sC1}, s44")
            break
    a.label(f"{name}_done"); e("s_endpgm")
    return name, kernel_desc(name, max(NV1, NV2), max(NA1, NA2), 90), (248, 256, max(lds1, lds2))
```

```python
from asmlib import *
from gemm import f32hex

def ln_math(a, D, F, X, NI, rbits, ncols, smask, sAND, sC1, sC2):
    e = a.e
    def fl(i, k): return F + i * 8 + k
    if smask:
        for k in range(4): e(f"v_cndmask_b32 v{D+(NI-1)*4+k}, 0, v{D+(NI-1)*4+k}, {smask}")
    for i in range(NI):
        for k in range(4):
            e(f"v_lshlrev_b32 v{fl(i,2*k)}, 16, v{D+i*4+k}")
            e(f"v_and_b32 v{fl(i,2*k+1)}, s{sAND}, v{D+i*4+k}")
    def reduce(rg):
        for b in range(rbits, 5):
            off = ((1 << b) << 10) | 0x1F
            e(f"ds_swizzle_b32 v{X+4}, v{rg} offset:{hex(off)}")
            e("s_waitcnt lgkmcnt(0)")
            e(f"v_add_f32 v{rg}, v{rg}, v{X+4}")
        e(f"v_mov_b32 v{X+4}, v{rg}")
        e("s_nop 1")
        e(f"v_permlane32_swap_b32 v{X+4}, v{rg}")
        e("s_nop 1")
        e(f"v_add_f32 v{rg}, v{rg}, v{X+4}")
    allf = [fl(i, k) for i in range(NI) for k in range(8)]
    e(f"v_add_f32 v{X}, v{allf[0]}, v{allf[1]}")
    e(f"v_add_f32 v{X+1}, v{allf[2]}, v{allf[3]}")
    for n, r in enumerate(allf[4:]): e(f"v_add_f32 v{X+(n&1)}, v{X+(n&1)}, v{r}")
    e(f"v_add_f32 v{X}, v{X}, v{X+1}")
    reduce(X)
    e(f"s_mov_b32 s{sC1}, {f32hex(1.0/ncols)}")
    e(f"v_mul_f32 v{X}, s{sC1}, v{X}")
    e(f"v_mov_b32 v{X+1}, 0"); e(f"v_mov_b32 v{X+2}, 0")
    for n, r in enumerate(allf):
        t = X + 5 + (n & 1)
        e(f"v_sub_f32 v{t}, v{r}, v{X}")
        if smask and n >= (NI - 1) * 8: e(f"v_cndmask_b32 v{t}, 0, v{t}, {smask}")
        e(f"v_fmac_f32 v{X+1+(n&1)}, v{t}, v{t}")
    e(f"v_add_f32 v{X+1}, v{X+1}, v{X+2}")
    reduce(X + 1)
    m = X; v = X + 1; t = X + 4
    e(f"s_mov_b32 s{sC2}, {f32hex(1e-5)}")
    e(f"v_mul_f32 v{v}, s{sC1}, v{v}")
    e(f"v_cvt_pk_bf16_f32 v{t}, v{m}, v{v}")
    e(f"v_lshlrev_b32 v{m}, 16, v{t}")
    e(f"v_and_b32 v{v}, s{sAND}, v{t}")
    e(f"v_add_f32 v{v}, s{sC2}, v{v}")
    e(f"v_cvt_pk_bf16_f32 v{t}, v{v}, v{v}")
    e(f"v_and_b32 v{v}, s{sAND}, v{t}")
    e(f"v_sqrt_f32 v{v}, v{v}")
    e("s_nop 0")
    e(f"v_cvt_pk_bf16_f32 v{t}, v{v}, v{v}")
    e(f"v_and_b32 v{v}, s{sAND}, v{t}")
    e(f"v_rcp_f32 v{v}, v{v}")
    e("s_nop 0")
    for i in range(NI):
        for k in range(4):
            a0 = fl(i, 2 * k); a1 = a0 + 1; tt = X + 5 + (k & 1)
            e(f"v_sub_f32 v{a0}, v{a0}, v{m}"); e(f"v_sub_f32 v{a1}, v{a1}, v{m}")
            e(f"v_cvt_pk_bf16_f32 v{tt}, v{a0}, v{a1}")
            e(f"v_lshlrev_b32 v{a0}, 16, v{tt}"); e(f"v_and_b32 v{a1}, s{sAND}, v{tt}")
            e(f"v_mul_f32 v{a0}, v{a0}, v{v}"); e(f"v_mul_f32 v{a1}, v{a1}, v{v}")
            e(f"v_cvt_pk_bf16_f32 v{D+i*4+k}, v{a0}, v{a1}")

def gen_ln1(a):
    name = "ln1_kernel"
    e = a.e
    kernel_header(a, name)
    e("s_cmp_ge_u32 s2, 256"); e(f"s_cbranch_scc1 {name}_done")
    e("s_load_dwordx2 s[4:5], s[0:1], 0")
    e("s_load_dwordx2 s[8:9], s[0:1], 96")
    e("v_lshrrev_b32 v1, 6, v0")
    e("v_and_b32 v2, 63, v0")
    e("s_nop 0")
    e("v_readfirstlane_b32 s20, v1")
    e("s_lshl_b32 s21, s2, 3")
    e("s_lshl_b32 s22, s20, 2")
    e("s_add_u32 s21, s21, s22")
    e("v_and_b32 v3, 3, v2")
    e("v_lshrrev_b32 v4, 2, v2")
    e("v_add_u32 v5, s21, v3")
    e("s_mov_b32 s22, 1280")
    e("v_mul_lo_u32 v6, v5, s22")
    e("v_lshl_add_u32 v6, v4, 4, v6")
    e("s_waitcnt lgkmcnt(0)")
    e(f"s_mov_b32 s6, {2048*640*2}"); e("s_mov_b32 s7, 0x20000")
    if WS_XN:
        e(f"s_add_u32 s8, s8, {WS_XN}"); e("s_addc_u32 s9, s9, 0")
    e(f"s_mov_b32 s10, {2048*640*2}"); e("s_mov_b32 s11, 0x20000")
    D = 16; F = D + 20; X = F + 40
    for i in range(5): e(f"buffer_load_dwordx4 {vr(D+4*i,4)}, v6, s[4:7], 0 offen offset:{i*256}")
    e("v_lshrrev_b32 v7, 5, v5")
    e("s_mov_b32 s22, 40960")
    e("v_mul_lo_u32 v7, v7, s22")
    e("v_lshrrev_b32 v8, 1, v4")
    e("v_lshl_add_u32 v7, v8, 10, v7")
    e("v_and_b32 v8, 1, v4")
    e("v_lshl_add_u32 v7, v8, 9, v7")
    e("v_and_b32 v8, 31, v5")
    e("v_lshl_add_u32 v7, v8, 4, v7")
    e("s_mov_b32 s24, 0xffff0000")
    e("s_waitcnt vmcnt(0)")
    ln_math(a, D, F, X, 5, 2, 640, None, 24, 25, 26)
    for i in range(5):
        e(f"s_mov_b32 s22, {i*8192}")
        e(f"buffer_store_dwordx4 {vr(D+4*i,4)}, v7, s[8:11], s22 offen")
    a.label(f"{name}_done")
    e("s_endpgm")
    return name, kernel_desc(name, X + 8, 0, 32), (256, 128, 0)
```

```python
import sys
from asmlib import *
from attn2 import gen_attn2
from gemm2 import gen_win, gen_fin, gen_spwo, STAMP
from ln2 import gen_ln1

HEADER = open("recurrent_scan__mha_block_cached__mixer_gmlp__prompt.s.ref").read().split("; Override launch")[0]

def build(out_path, stamp=False, **kw):
    a = Asm()
    STAMP['on'] = stamp
    ks = []
    ks.append(gen_ln1(a))
    ks.append(gen_win(a, **kw.get("win", {})))
    ks.append(("attn_kernel",) + gen_attn2(a, stamp=stamp))
    ks.append(gen_spwo(a, **kw.get("spwo", {})))
    ks.append(gen_fin(a, **kw.get("fin", {})))
    out = HEADER
    for (n, d, (g, b, l)) in ks:
        out += f"; @launch kernel={n} grid=({g},1,1) block=({b},1,1) lds={l}\n"
    out += '.amdgcn_target "amdgcn-amd-amdhsa--gfx950"\n.text\n' + a.text() + 'text_end:\n'
    out += '.section .rodata,"a"\n.p2align 6\n'
    for (n, d, _) in ks: out += ".p2align 6\n" + d
    open(out_path, "w").write(out)

if __name__ == "__main__":
    build("recurrent_scan__mha_block_cached__mixer_gmlp__prompt.s")
    build("full.s")
    build("full_st.s", stamp=True)
```

```python
from asmlib import *
from gemm import f32hex
from ln2 import ln_math
import math

class VM:
    def __init__(self): self.ops = []
    def add(self, tag, n=1): self.ops += [tag] * n
    def wait(self, *tags):
        last = max(i for i, t in enumerate(self.ops) if t in tags)
        n = len(self.ops) - 1 - last
        assert n <= 63
        return n

def gen_attn2(a, name="attn_kernel", THR_LOG2=20, stamp=False):
    NB = 2; NW = 4; NPW = 4
    KADDR = 8; VADDR = 16; KDMA = 20; VDMA = 24; L = 25; BS = 27; E = 28
    SB = 32
    def S(buf, b): return SB + (buf * NB + b) * 16
    CIB = SB + 2 * NB * 16
    def CI(b): return CIB + 16 * b
    PB = CIB + 16 * NB
    def P(buf, b): return PB + (buf * NB + b) * 8
    X0 = PB + 16 * NB
    WDMA = X0; WADDR = X0 + 4; XOFF = X0 + 8; T = X0 + 12
    LNB = T + 8
    def O(b, db): return (b * 4 + db) * 16
    QB = 128
    def Q(b, s): return QB + (b * 8 + s) * 4
    KFB = 192
    def KF(s): return KFB + 4 * s
    VFB = 224
    def VF(db, ks): return VFB + (db * 2 + ks) * 4
    NA = 256
    def QA(b, db): return SB + (b * 4 + db) * 16
    def XF(buf, b, ks): return buf * 32 + (b * 4 + ks) * 4
    def WF(buf, db): return KFB + buf * 16 + db * 4
    sK, sV, sX, sO, sWQ, sZ, sZN = 4, 8, 12, 16, 36, 40, 44
    sW, sM0, sKT, sVT, sIT, sTHR, sHEAD, sQB, sT, sT2, sWT, sB1 = 20, 21, 22, 23, 30, 31, 32, 33, 34, 35, 48, 49
    VBASE = 65536; WBASE = 98304
    slow_blocks = []
    vm = VM()
    kernel_header(a, name)
    e = a.e
    e("s_cmp_ge_u32 s2, 256")
    e(f"s_cbranch_scc1 {name}_done")
    if stamp:
        e("s_memtime s[60:61]"); e("s_memrealtime s[62:63]"); e("s_load_dwordx2 s[76:77], s[0:1], 88")
    e("s_load_dwordx4 s[24:27], s[0:1], 8")
    e("s_load_dwordx2 s[28:29], s[0:1], 96")
    e(f"s_load_dwordx2 s[{sWQ}:{sWQ+1}], s[0:1], 24")
    e("s_load_dwordx2 s[84:85], s[0:1], 56")
    e("s_load_dwordx2 s[88:89], s[0:1], 32")
    e("s_load_dwordx2 s[92:93], s[0:1], 72")
    e(f"s_and_b32 s{sT}, s2, 7")
    e(f"s_lshl_b32 s{sT}, s{sT}, 2")
    e(f"s_lshr_b32 s{sHEAD}, s2, 6")
    e(f"s_add_u32 s{sHEAD}, s{sHEAD}, s{sT}")
    e(f"s_lshr_b32 s{sQB}, s2, 3")
    e(f"s_and_b32 s{sQB}, s{sQB}, 7")
    e("v_lshrrev_b32 v1, 6, v0")
    e("v_and_b32 v2, 63, v0")
    e("s_nop 0")
    e(f"v_readfirstlane_b32 s{sW}, v1")
    e(f"s_lshl_b32 s{sT}, s{sHEAD}, 19")
    e("s_waitcnt lgkmcnt(0)")
    make_srd(a, sK, 24, 25, 524288, f"s{sT}")
    make_srd(a, sV, 26, 27, 524288, f"s{sT}")
    make_srd(a, sX, 28, 29, 2048 * 640 * 2, WS_XN if WS_XN else None)
    make_srd(a, sO, 28, 29, 16 << 20, WS_O)
    make_srd(a, sZ, 28, 29, 2048 * 1728 * 2, WS_Z)
    make_srd(a, sZN, 28, 29, 2048 * 864 * 2, WS_Z2N)
    e(f"s_mov_b32 s86, {2048*2048*2}"); e("s_mov_b32 s87, 0x20000")
    e(f"s_mov_b32 s90, {4096*640*2}"); e("s_mov_b32 s91, 0x20000")
    e(f"s_mov_b32 s94, {864*640*2}"); e("s_mov_b32 s95, 0x20000")
    e(f"s_lshl_b32 s96, s2, 2")
    e(f"s_add_u32 s96, s96, s{sW}")
    e(f"s_lshl_b32 s96, s96, 10")
    e(f"s_mov_b32 s{sWQ+2}, {640*4096*2}")
    e(f"s_mov_b32 s{sWQ+3}, 0x20000")
    LD = LNB if LNB % 4 == 0 else LNB + (4 - LNB % 4)
    LF = LD + 16; LX = LF + 32
    NV = LX + 8
    e(f"s_lshl_b32 s{sT}, s2, 3")
    e(f"s_lshl_b32 s{sT2}, s{sW}, 1")
    e(f"s_add_u32 s50, s{sT}, s{sT2}")
    e("v_and_b32 v3, 1, v2")
    e("v_add_u32 v3, s50, v3")
    e("v_lshrrev_b32 v5, 1, v2")
    e("v_lshrrev_b32 v6, 5, v3")
    e(f"s_mov_b32 s{sT}, {108*1024}")
    e(f"v_mul_lo_u32 v6, v6, s{sT}")
    e("v_lshrrev_b32 v7, 1, v5")
    e("v_lshl_add_u32 v6, v7, 10, v6")
    e("v_and_b32 v7, 1, v5")
    e("v_lshl_add_u32 v6, v7, 9, v6")
    e("v_and_b32 v7, 31, v3")
    e("v_lshl_add_u32 v6, v7, 4, v6")
    e(f"v_mov_b32 v{LX+7}, v6")
    e(f"s_mov_b32 s{sT}, 1728")
    e(f"v_mul_lo_u32 v3, v3, s{sT}")
    e("v_lshl_add_u32 v3, v5, 4, v3")
    e("v_cmp_gt_u32 s[54:55], 12, v5")
    e(f"v_mov_b32 v{T+4}, 0x7fff0000")
    e("s_nop 0")
    e(f"v_cndmask_b32 v{T+4}, v{T+4}, v3, s[54:55]")
    def zloads():
        r = []
        for i in range(4):
            r.append(f"s_mov_b32 s58, {(54+16*i)*1024}")
            r.append(f"buffer_load_dwordx4 {vr(LD+4*i,4)}, v{LX+7}, {sr(sZ,4)}, s58 offen")
        return r
    e(f"s_mul_i32 s{sM0}, s{sW}, {NPW*1024}")
    e(f"s_mov_b32 s{sTHR}, {hex((127 + THR_LOG2) << 23)}")
    e(f"s_lshl_b32 s{sT}, s{sQB}, 8")
    e(f"s_lshl_b32 s{sT2}, s{sW}, 6")
    e(f"s_add_u32 s51, s{sT}, s{sT2}")
    e("v_lshrrev_b32 v4, 5, v2")
    e(f"v_lshlrev_b32 v{XOFF}, 4, v2")
    e(f"s_lshr_b32 s{sT}, s51, 5")
    e(f"s_mul_i32 s57, s{sT}, 40960")
    e(f"s_add_u32 s{sB1}, s57, 40960")
    def xload(t):
        r = []
        for b in range(2):
            for ks in range(4):
                so = "s57" if b == 0 else f"s{sB1}"
                r.append(f"buffer_load_dwordx4 {ar(XF(t%4,b,ks),4)}, v{XOFF}, {sr(sX,4)}, {so} offen offset:{ks*1024}")
        r += ["s_add_u32 s57, s57, 4096", f"s_add_u32 s{sB1}, s{sB1}, 4096"]
        return r
    e("v_lshrrev_b32 v5, 4, v2")
    e("v_and_b32 v6, 15, v2")
    e(f"s_lshl_b32 s{sT}, s{sW}, 4")
    e(f"v_add_u32 v7, s{sT}, v5")
    for i in range(NPW):
        e(f"v_add_u32 v1, {4*i}, v7")
        e("v_and_b32 v1, 15, v1")
        e("v_xor_b32 v1, v1, v6")
        e("v_lshlrev_b32 v1, 4, v1")
        e(f"v_lshl_add_u32 v{KDMA+i}, v7, 8, v1")
    e("v_lshlrev_b32 v1, 2, v5")
    e("v_xor_b32 v1, v1, v6")
    e("v_lshlrev_b32 v1, 4, v1")
    e(f"v_lshl_add_u32 v{VDMA}, v7, 8, v1")
    e(f"s_lshl_b32 s{sT}, s{sHEAD}, 8")
    e(f"v_add_u32 v1, s{sT}, v1")
    e("v_lshl_add_u32 v1, v7, 13, v1")
    for i in range(NPW):
        e(f"v_add_u32 v{WDMA+i}, {i*(4*8192-1024)}, v1")
    e(f"s_mov_b32 s{sKT}, 0"); e(f"s_mov_b32 s{sVT}, 0"); e(f"s_mov_b32 s{sWT}, 0")
    def dma_k(stage):
        r = [f"s_add_u32 m0, s{sM0}, {stage*16384}", "s_nop 0"]
        for i in range(NPW):
            r.append(f"buffer_load_dwordx4 v{KDMA+i}, {sr(sK,4)}, s{sKT} offen offset:{i*1024} lds")
        r.append(f"s_add_u32 s{sKT}, s{sKT}, 16384")
        return r
    def dma_v(stage):
        r = [f"s_add_u32 m0, s{sM0}, {VBASE + stage*16384}", "s_nop 0"]
        for i in range(NPW):
            r.append(f"buffer_load_dwordx4 v{VDMA}, {sr(sV,4)}, s{sVT} offen offset:{i*1024} lds")
        r.append(f"s_add_u32 s{sVT}, s{sVT}, 16384")
        return r
    def dma_w(t):
        r = [f"s_add_u32 m0, s{sM0}, {WBASE + (t%4)*16384}", "s_nop 0"]
        for i in range(NPW):
            r.append(f"buffer_load_dwordx4 v{WDMA+i}, {sr(sWQ,4)}, s{sWT} offen offset:{i*1024} lds")
        r.append(f"s_add_u32 s{sWT}, s{sWT}, {64*8192}")
        return r
    def issue(lst, tag):
        for i in lst:
            if i.startswith("buffer_"): vm.add(tag)
        return lst
    a.many(issue(dma_w(0), "w0")); a.many(issue(xload(0), "x0"))
    a.many(issue(dma_w(1), "w1")); a.many(issue(xload(1), "x1"))
    e("v_and_b32 v1, 31, v2")
    e("v_and_b32 v5, 15, v2")
    for s in range(8):
        e(f"v_add_u32 v6, {2*s}, v4")
        e("v_xor_b32 v6, v6, v5")
        e("v_lshlrev_b32 v6, 4, v6")
        e(f"v_lshl_add_u32 v{KADDR+s}, v1, 8, v6")
    e("v_lshrrev_b32 v6, 2, v5")
    e("v_lshl_add_u32 v7, v4, 2, v6")
    e("v_lshlrev_b32 v7, 8, v7")
    e("v_and_b32 v1, 3, v2")
    e("v_lshl_add_u32 v7, v1, 3, v7")
    e("v_bfe_u32 v1, v2, 4, 1")
    e("v_lshl_add_u32 v7, v1, 5, v7")
    e(f"v_add_u32 v7, {VBASE}, v7")
    for db in range(4):
        e(f"v_xor_b32 v1, {db}, v6")
        e(f"v_lshl_add_u32 v{VADDR+db}, v1, 6, v7")
    e("v_lshl_add_u32 v7, v4, 3, v6")
    e("v_lshlrev_b32 v7, 8, v7")
    e("v_and_b32 v1, 1, v2")
    e("v_lshl_add_u32 v7, v1, 4, v7")
    e("v_bfe_u32 v1, v2, 1, 1")
    e("v_lshl_add_u32 v7, v1, 3, v7")
    e("v_bfe_u32 v1, v2, 4, 1")
    e("v_lshl_add_u32 v7, v1, 5, v7")
    e(f"v_add_u32 v7, {WBASE}, v7")
    for db in range(4):
        e(f"v_xor_b32 v1, {db}, v6")
        e(f"v_lshl_add_u32 v{WADDR+db}, v1, 6, v7")
    e("s_mov_b32 s52, 0xffff0000")
    e(f"s_mov_b32 s59, {f32hex(math.log2(math.e) / math.sqrt(128.0))}")
    tmp = Asm()
    ln_math(tmp, LD, LF, LX, 4, 1, 864, "s[54:55]", 52, 53, 56)
    lnq = ["WAITZ"] + [l.strip() for l in tmp.lines]
    for i in range(4):
        lnq.append(f"buffer_store_dwordx4 {vr(LD+4*i,4)}, v{3 if i < 3 else T+4}, {sr(sZN,4)}, 0 offen offset:{i*512}")
    for r in range(32): lnq.append(f"v_accvgpr_write_b32 a{VFB+r}, 0")
    if stamp: e("s_memtime s[64:65]")
    def wread(buf, t, ks):
        r = []
        for db in range(4):
            off = (t % 4) * 16384 + ks * 4096
            r.append(f"ds_read_b64_tr_b16 {ar(WF(buf,db),2)}, v{WADDR+db} offset:{off}")
            r.append(f"ds_read_b64_tr_b16 {ar(WF(buf,db)+2,2)}, v{WADDR+db} offset:{off+1024}")
        return r
    def wread_db(buf, t, db):
        r = []
        for ks in range(4):
            off = (t % 4) * 16384 + ks * 4096
            r.append(f"ds_read_b64_tr_b16 {ar(WF(buf,ks),2)}, v{WADDR+db} offset:{off}")
            r.append(f"ds_read_b64_tr_b16 {ar(WF(buf,ks)+2,2)}, v{WADDR+db} offset:{off+1024}")
        return r
    def qconv(db):
        r = []
        for b in range(2):
            for u in range(2):
                base = QA(b, db) + 8 * u
                for i in range(8): r.append(f"v_mul_f32 v{base+i}, s59, v{base+i}")
                for i in range(4): r.append(f"v_cvt_pk_bf16_f32 v{base+i}, v{base+2*i}, v{base+2*i+1}")
                for i in range(4): r.append(f"v_accvgpr_write_b32 a{Q(b,2*db+u)+i}, v{base+i}")
        return r
    vq = []
    def enqueue(lst, tag):
        cur = []
        for ins in lst:
            if ins == "s_nop 0": continue
            cur.append(ins)
            if ins.startswith("buffer_"):
                vq.append((cur, tag)); cur = []
        if cur: vq[-1][0].extend(cur)
    e(f"s_waitcnt vmcnt({vm.wait('x0','w0')})")
    e("s_barrier")
    a.many(wread(0, 0, 0))
    LA = OPT.get('la', 3)
    extra_dma = {2: [(zloads(), "z")], 6: [(dma_k(0), "k0"), (dma_k(1), "k1")], 7: [(dma_v(0), "v0"), (dma_k(2), "k2"), (dma_v(1), "v1")] + ([(dma_k(3), "k3")] if LA == 4 else [])}
    fq = []
    for t in range(10):
        if t == 0:
            enqueue(dma_w(2), "w2"); enqueue(xload(2), "x2"); enqueue(dma_w(3), "w3")
        if t + 3 < 10: enqueue(xload(t + 3), f"x{t+3}")
        for (lst, tag) in extra_dma.get(t, []): enqueue(lst, tag)
        if t == 4: fq += lnq
        if t == 8: fq += [f"v_accvgpr_write_b32 a{r}, 0" for r in range(64, 128)]
        if t == 9: fq += [f"v_accvgpr_write_b32 a{r}, 0" for r in range(0, 32)]
        for ph in range(4):
            buf = ph & 1
            mf = []
            if t < 9:
                ks = ph
                for db in range(4):
                    for b in range(2):
                        c = "0" if (t == 0 and ks == 0) else vr(QA(b, db), 16)
                        mf.append(f"v_mfma_f32_32x32x16_bf16 {vr(QA(b,db),16)}, {ar(WF(buf,db),4)}, {ar(XF(t%4,b,ks),4)}, {c}")
            else:
                db = ph
                for ks in range(4):
                    for b in range(2):
                        mf.append(f"v_mfma_f32_32x32x16_bf16 {vr(QA(b,db),16)}, {ar(WF(buf,ks),4)}, {ar(XF(t%4,b,ks),4)}, {vr(QA(b,db),16)}")
                if ph >= 2: fq += qconv(ph - 2)
            pre = ["s_waitcnt lgkmcnt(0)"]
            rd = []
            if ph < 3:
                rd = wread(1 - buf, t, ph + 1) if t < 9 else wread_db(1 - buf, t, ph + 1)
                left = 3 - ph
            elif t < 9:
                assert not vq
                pre = [f"s_waitcnt vmcnt({vm.wait(f'x{t+1}', f'w{t+1}')}) lgkmcnt(0)", "s_barrier"]
                rd = wread(0, t + 1, 0) if t + 1 < 9 else wread_db(0, t + 1, 0)
                if t + 4 < 10: enqueue(dma_w(t + 4), f"w{t+4}")
                left = 4
            else:
                left = 1
            take = min(len(vq), -(-len(vq) // left)) if vq else 0
            grp = [vq.pop(0) for _ in range(take)]
            a.many(pre)
            gpos = {}
            for i_, gr in enumerate(grp): gpos.setdefault(7 - (take - 1 - i_) if take <= 8 else i_ * 8 // take, []).append(gr)
            for g in range(8):
                e(mf[g])
                budget = 24
                for r_ in rd[2*g:2*g+2]: e(r_); budget -= 4
                for (ins_list, tag) in gpos.get(g, []):
                    for k_, ins in enumerate(ins_list):
                        if ins.startswith("buffer_"):
                            vm.add(tag)
                            if k_ > 0 and "m0" in ins_list[k_-1] and ins.endswith("lds"): e("s_nop 0")
                        e(ins)
                    budget -= 16
                while fq and budget > 0:
                    ins = fq.pop(0)
                    if ins == "WAITZ": ins = f"s_waitcnt vmcnt({vm.wait('z')})"
                    if ins.startswith("buffer_"): vm.add("zs"); budget -= 12
                    e(ins); budget -= cost(ins)
    e(f"s_waitcnt vmcnt({vm.wait('k0','k1','v0','k2','v1','k3')})")
    e("s_barrier")
    if LA == 4: a.many(issue(dma_v(2), "v2"))
    assert not any(i.startswith("buffer_") or i == "WAITZ" for i in fq)
    a.many(fq)
    for r in range(32, 64): e(f"v_accvgpr_write_b32 a{r}, 0")
    a.many(qconv(2)); a.many(qconv(3))
    for b in range(NB):
        for r in range(8): e(f"v_mov_b32 v{P(1,b)+r}, 0")
        e(f"v_mov_b32 v{L+b}, 0")
    def kread(s, ht):
        off = ((ht >> 1) % 4) * 16384 + (ht & 1) * 8192
        return f"ds_read_b128 {ar(KF(s),4)}, v{KADDR+s} offset:{off}"
    def vread(db, ks, ht):
        off = ((ht >> 1) % 4) * 16384 + (ht & 1) * 8192 + ks * 4096
        return [f"ds_read_b64_tr_b16 {ar(VF(db,ks),2)}, v{VADDR+db} offset:{off}",
                f"ds_read_b64_tr_b16 {ar(VF(db,ks)+2,2)}, v{VADDR+db} offset:{off+2048}"]
    for s in range(8): e(kread(s, 0))
    e("s_waitcnt lgkmcnt(0)")
    for b in range(NB):
        for s in range(8):
            c = "0" if s == 0 else vr(S(0,b),16)
            e(f"v_mfma_f32_32x32x16_bf16 {vr(S(0,b),16)}, {ar(KF(s),4)}, {ar(Q(b,s),4)}, {c}")
    for s in range(8): e(kread(s, 1))
    e("s_nop 15"); e("s_nop 3")
    def rowmax(dst, tmp, base):
        r = [f"v_max3_f32 v{dst}, v{base}, v{base+1}, v{base+2}"]
        for i in range(3, 15, 2):
            r.append(f"v_max3_f32 v{dst}, v{dst}, v{base+i}, v{base+i+1}")
        r.append(f"v_max_f32 v{dst}, v{dst}, v{base+15}")
        r += [f"v_mov_b32 v{tmp}, v{dst}", "s_nop 1", f"v_permlane32_swap_b32 v{tmp}, v{dst}", "s_nop 1",
              f"v_max_f32 v{dst}, v{dst}, v{tmp}"]
        return r
    for b in range(NB):
        a.many(rowmax(E, E+1, S(0,b)))
        for r in range(16):
            e(f"v_sub_f32 v{CI(b)+r}, 0, v{E}")
            e(f"v_sub_f32 v{S(0,b)+r}, v{S(0,b)+r}, v{E}")
    e(f"s_mov_b32 s{sIT}, 0")
    e("s_waitcnt lgkmcnt(0)")
    e("s_nop 1")

    def sm_list(p, b):
        sb = S(p, b); pb = P(p, b)
        def ea(q): return E + 2 * (q % 2)
        def eb(q): return E + 2 * (q % 2) + 1
        r = [f"v_exp_f32 v{ea(0)}, v{sb}", f"v_exp_f32 v{eb(0)}, v{sb+1}"]
        for q in range(1, 9):
            pq = q - 1
            if q < 8: r.append(f"v_exp_f32 v{ea(q)}, v{sb+2*q}")
            if pq == 0:
                r.append(f"v_add_f32 v{BS}, v{ea(0)}, v{eb(0)}")
            else:
                r.append(f"v_add_f32 v{BS}, v{BS}, v{ea(pq)}")
                r.append(f"v_add_f32 v{BS}, v{BS}, v{eb(pq)}")
            if q < 8: r.append(f"v_exp_f32 v{eb(q)}, v{sb+2*q+1}")
            r.append(f"v_cvt_pk_bf16_f32 v{pb+pq}, v{ea(pq)}, v{eb(pq)}")
        return r
    def slow(lbl, ret, p, b):
        r = [lbl + ":"]
        x = ["s_nop 15", "s_nop 15"]
        x += rowmax(E, E+1, S(p, b))
        x += [f"v_ceil_f32 v{E}, v{E}", f"v_max_f32 v{E}, 0, v{E}",
              f"v_cvt_i32_f32 v{E+1}, v{E}", f"v_sub_u32 v{E+1}, 0, v{E+1}",
              f"v_ldexp_f32 v{E+1}, 1.0, v{E+1}"]
        for rr in range(64):
            x += [f"v_accvgpr_read_b32 v{E+2}, a{O(b,0)+rr}", f"v_mul_f32 v{E+2}, v{E+2}, v{E+1}",
                  f"v_accvgpr_write_b32 a{O(b,0)+rr}, v{E+2}"]
        x.append(f"v_mul_f32 v{L+b}, v{L+b}, v{E+1}")
        for rr in range(16):
            x += [f"v_sub_f32 v{CI(b)+rr}, v{CI(b)+rr}, v{E}", f"v_sub_f32 v{S(p,b)+rr}, v{S(p,b)+rr}, v{E}",
                  f"v_sub_f32 v{S(1-p,b)+rr}, v{S(1-p,b)+rr}, v{E}"]
        x += sm_list(p, b)
        x += ["s_nop 1", f"s_branch {ret}"]
        return r + ["    " + i for i in x]
    if stamp:
        e("s_memtime s[66:67]"); e("s_waitcnt lgkmcnt(0)")
    a.raw(".p2align 6")
    a.label(f"{name}_loop")
    for uu in range(8):
        p = uu & 1
        a.c(f"==== slot {uu}")
        for b in range(NB):
            mf = []
            for s in range(8):
                c = vr(CI(b),16) if s == 0 else vr(S(1-p,b),16)
                mf.append(f"v_mfma_f32_32x32x16_bf16 {vr(S(1-p,b),16)}, {ar(KF(s),4)}, {ar(Q(b,s),4)}, {c}")
            pv = [(db, ks) for ks in range(2) for db in range(4)]
            for (db, ks) in pv:
                mf.append(f"v_mfma_f32_32x32x16_bf16 {ar(O(b,db),16)}, {ar(VF(db,ks),4)}, {vr(P(1-p,b)+4*ks,4)}, {ar(O(b,db),16)}")
            fixed = {g: [] for g in range(16)}
            tail = {g: [] for g in range(16)}
            if b == NB - 1:
                for s in range(8): fixed[s].append(kread(s, uu + 2))
                for i, (db, ks) in enumerate(pv): fixed[8 + i] += vread(db, ks, uu)
                fixed[10].insert(0, "s_waitcnt lgkmcnt(4)")
            if b == 0:
                if p == 0:
                    tail[7] += [f"s_waitcnt vmcnt({(3 if LA == 4 else 2)*NPW}) lgkmcnt(0)", "s_barrier"]
                    d = dma_k(((uu >> 1) + LA) % 4)
                else:
                    tail[7] += [f"s_waitcnt lgkmcnt(0)"]
                    d = dma_v(((uu >> 1) + LA - 1) % 4)
                fixed[8].append(d[0])
                for i in range(NPW): fixed[9 + i].append(d[2 + i])
                fixed[15].append(d[-1])
                if p == 1 and uu < 6 and OPT['prefetch']:
                    fixed[14].append(f"buffer_load_dwordx4 {vr(T,4)}, v{XOFF}, s[{84+4*(uu>>1)}:{87+4*(uu>>1)}], s96 offen")
                if uu == 7: fixed[14].append("s_add_u32 s96, s96, 0x100000")
            lbl = f"{name}_slow_{uu}_{b}"; ret = f"{name}_ret_{uu}_{b}"
            items = sm_list(p, b)
            chk = [f"v_cmp_lt_f32 vcc, s{sTHR}, v{BS}", f"s_cbranch_vccnz {lbl}", ret + ":", f"v_add_f32 v{L+b}, v{L+b}, v{BS}"]
            if uu == 7 and b == NB - 1:
                chk += [f"s_add_u32 s{sIT}, s{sIT}, 1", f"s_cmp_lt_u32 s{sIT}, 8", f"s_cbranch_scc1 {name}_loop"]
            gaps = distribute(items + ["s_nop 0"] * 3, 16, fixed)
            gaps = [[i for i in g if i != "s_nop 0"] for g in gaps]
            for g in range(16):
                e(mf[g])
                for i in gaps[g]: e(i)
                for i in tail[g]: e(i)
            for i in chk:
                if i.endswith(":"): a.raw(i)
                else: e(i)
            slow_blocks += slow(lbl, ret, p, b)
    if stamp: e("s_memtime s[68:69]")
    e("s_waitcnt lgkmcnt(0)")
    for b in range(NB):
        for ks in range(2):
            for db in range(4):
                e(f"v_mfma_f32_32x32x16_bf16 {ar(O(b,db),16)}, {ar(VF(db,ks),4)}, {vr(P(1,b)+4*ks,4)}, {ar(O(b,db),16)}")
    for b in range(NB):
        e(f"v_mov_b32 v{E}, v{L+b}")
        e("s_nop 1")
        e(f"v_permlane32_swap_b32 v{E}, v{L+b}")
        e("s_nop 1")
        e(f"v_add_f32 v{L+b}, v{L+b}, v{E}")
        e(f"v_rcp_f32 v{L+b}, v{L+b}")
    e(f"s_lshr_b32 s{sT}, s51, 5")
    e(f"s_lshl_b32 s{sT}, s{sT}, 18")
    e(f"s_lshl_b32 s{sT2}, s{sHEAD}, 13")
    e(f"s_add_u32 s{sT}, s{sT}, s{sT2}")
    e("s_nop 7")
    TT = S(0, 0)
    for b in range(NB):
        for db in range(4):
            for gp in range(2):
                t = TT + ((db * 2 + gp) % 4) * 12
                for i in range(8): e(f"v_accvgpr_read_b32 v{t+4+i}, a{O(b,db)+8*gp+i}")
                for i in range(8): e(f"v_mul_f32 v{t+4+i}, v{t+4+i}, v{L+b}")
                for i in range(4): e(f"v_cvt_pk_bf16_f32 v{t+i}, v{t+4+2*i}, v{t+4+2*i+1}")
                e("s_nop 1")
                e(f"v_permlane32_swap_b32 v{t}, v{t+2}")
                e(f"v_permlane32_swap_b32 v{t+1}, v{t+3}")
                k = db * 2 + gp
                if k % 4 == 0: e(f"s_add_u32 s{sT2}, s{sT}, {b*262144 + k*1024}")
                else: e("s_nop 0")
                e(f"buffer_store_dwordx4 {vr(t,4)}, v{XOFF}, {sr(sO,4)}, s{sT2} offen offset:{(k%4)*1024}")
    if stamp:
        e("s_waitcnt vmcnt(0)")
        e("s_memtime s[70:71]"); e("s_memrealtime s[72:73]")
        e("s_waitcnt lgkmcnt(0)")
        e("s_mov_b32 s78, 256"); e("s_mov_b32 s79, 0x20000")
        e(f"s_cmp_lg_u32 s{sW}, 0"); e(f"s_cbranch_scc1 {name}_done")
        e("s_and_b32 s80, s2, 0x3f"); e("s_cmp_lg_u32 s80, 5"); e(f"s_cbranch_scc1 {name}_done")
        e("s_lshr_b32 s80, s2, 6"); e("s_lshl_b32 s80, s80, 6")
        for i in range(14): e(f"v_mov_b32 v{32+i}, s{60+i}")
        e("v_mov_b32 v1, 0")
        e("v_cmp_eq_u32 vcc, 0, v2")
        e("s_and_saveexec_b64 s[82:83], vcc")
        for i in range(4): e(f"buffer_store_dwordx4 v[{32+4*i}:{35+4*i}], v1, s[76:79], s80 offen offset:{16*i}")
        e("s_waitcnt vmcnt(0)")
    a.label(f"{name}_done")
    e("s_endpgm")
    for l in slow_blocks: a.raw(l)
    return kernel_desc(name, NV, NA, 100), (256, 256, 163840)
```

```python
from asmlib import *
from gemm import f32hex
import math

LOG2E = math.log2(math.e)
STAMP = {"on": False}
def stamp(a, k):
    if STAMP["on"]:
        a.e(f"s_memtime s[{60+2*k}:{61+2*k}]")
def stamp_out(a, name):
    if not STAMP["on"]: return
    e = a.e
    lbl = a.newlabel(name + "_nost")
    e("s_waitcnt vmcnt(0)")
    e("s_memtime s[68:69]")
    e("s_load_dwordx2 s[76:77], s[0:1], 88")
    e("s_waitcnt lgkmcnt(0)")
    e("s_mov_b32 s78, 256"); e("s_mov_b32 s79, 0x20000")
    e(f"s_cmp_lg_u32 s{G.sW}, 0"); e(f"s_cbranch_scc1 {lbl}")
    e("s_and_b32 s80, s2, 0x3f"); e("s_cmp_lg_u32 s80, 5"); e(f"s_cbranch_scc1 {lbl}")
    e("s_lshr_b32 s80, s2, 6"); e("s_lshl_b32 s80, s80, 6")
    for i in range(12): e(f"v_mov_b32 v{32+i}, s{60+i}")
    e("v_mov_b32 v1, 0")
    e("v_cmp_eq_u32 vcc, 0, v2")
    e("s_and_saveexec_b64 s[82:83], vcc")
    for i in range(3): e(f"buffer_store_dwordx4 v[{32+4*i}:{35+4*i}], v1, s[76:79], s80 offen offset:{16*i}")
    e("s_waitcnt vmcnt(0)")
    a.label(lbl)

class G:
    sA, sB, sC, sX1, sX2 = 4, 8, 12, 16, 20
    sW, sM0, sAK, sBK, sIT, sM, sN, sT, sWM, sWN, sC0, sC1, sC2, sK0, sMB0 = 24, 25, 26, 27, 28, 29, 30, 31, 32, 33, 34, 35, 36, 37, 38

def gemm_body(a, name, N, Kfull, KT, last_nks, lda, ldb, epi, Mt, Nt, WM, WN, NST, amode, PF=3, ksteps_A=None, ldc=None, ldx=None, nsplit=1):
    g = G
    NW = WM * WN
    MB = Mt // WM // 32
    NBk = Nt // WN // 32
    ABYTES = Mt * 128 if amode == 'lds' else 0
    BBYTES = 64 * Nt * 2
    PA = Mt // 8 // NW if amode == 'lds' else 0
    PB = BBYTES // 1024 // NW
    assert PA <= 4 and 1 <= PB <= 4
    AFL = MB * 4 if amode == 'frag' else 0
    BROW = Nt * 2
    assert Nt in (64, 128)
    RPP = 1024 // BROW
    lds = (ABYTES + BBYTES) * NST
    assert NST * ABYTES <= 65536 and NST * BBYTES <= 65536
    AAD = 8; BAD = 12; ADM = 16; BDM = 20; VC = 24; VX = 25; VA = 26; T0 = 28
    ACC = 48
    def acc(mb, nb): return ACC + (mb * NBk + nb) * 16
    FR = ACC + MB * NBk * 16
    FA = MB if amode == 'lds' else 0
    def fa(buf, mb): return FR + buf * (FA + NBk) * 4 + mb * 4
    def fb(buf, nb): return FR + buf * (FA + NBk) * 4 + FA * 4 + nb * 4
    NV = FR + 2 * (FA + NBk) * 4
    AUX = NV
    if epi == 'sp': NV += MB * NBk * 8 + MB
    if epi == 'final': NV += MB * NBk * (8 * nsplit + 8)
    def auxz(mb, nb): return AUX + (mb * NBk + nb) * 8
    def auxb(mb): return AUX + MB * NBk * 8 + mb
    def auxp(mb, nb, sp): return AUX + ((mb * NBk + nb) * nsplit + sp) * 8
    def auxx(mb, nb): return AUX + MB * NBk * nsplit * 8 + (mb * NBk + nb) * 8
    NPF = PF + 1
    def xf(t, mb, ks): return ((t % NPF) * MB + mb) * 16 + ks * 4
    NA = NPF * MB * 16 if amode == 'frag' else 0
    sA, sB, sC, sX1, sX2 = g.sA, g.sB, g.sC, g.sX1, g.sX2
    sW, sM0, sAK, sBK, sIT, sM, sN, sT, sWM, sWN, sC0, sC1, sC2, sK0, sMB0 = g.sW, g.sM0, g.sAK, g.sBK, g.sIT, g.sM, g.sN, g.sT, g.sWM, g.sWN, g.sC0, g.sC1, g.sC2, g.sK0, g.sMB0
    e = a.e
    stamp(a, 0)
    e(f"s_and_b32 s{sWN}, s{sW}, {WN-1}")
    e(f"s_lshr_b32 s{sWM}, s{sW}, {WN.bit_length()-1}")
    e(f"s_lshr_b32 s{sMB0}, s{sM}, 5")
    e(f"s_mul_i32 s{sT}, s{sWM}, {MB}")
    e(f"s_add_u32 s{sMB0}, s{sMB0}, s{sT}")
    if amode == 'lds':
        e("v_lshrrev_b32 v3, 3, v2")
        e("v_and_b32 v4, 7, v2")
        e(f"s_mul_i32 s{sT}, s{sW}, {8*PA}")
        e(f"v_add_u32 v3, s{sT}, v3")
        e(f"s_mov_b32 s{sC0}, {lda*2}")
        for i in range(PA):
            e(f"v_add_u32 v5, {8*i}, v3")
            e("v_bfe_u32 v6, v5, 1, 3")
            e("v_xor_b32 v6, v6, v4")
            e(f"v_add_u32 v5, s{sM}, v5")
            e(f"v_mul_lo_u32 v5, v5, s{sC0}")
            e("v_lshl_add_u32 v5, v6, 4, v5")
            if i: e(f"v_subrev_u32 v5, {1024*i}, v5")
            e(f"v_mov_b32 v{ADM+i}, v5")
        e(f"s_lshl_b32 s{sAK}, s{sK0}, 7")
    else:
        for mb in range(MB):
            e(f"v_lshlrev_b32 v{ADM+mb}, 4, v2")
            if mb: e(f"v_add_u32 v{ADM+mb}, {mb*ksteps_A*1024}, v{ADM+mb}")
        e(f"s_mul_i32 s{sAK}, s{sMB0}, {ksteps_A*1024}")
        e(f"s_lshl_b32 s{sT}, s{sK0}, 12")
        e(f"s_add_u32 s{sAK}, s{sAK}, s{sT}")
    CPR = 64 // RPP
    lgc = CPR.bit_length() - 1
    e(f"v_lshrrev_b32 v3, {lgc}, v2")
    e(f"v_and_b32 v4, {CPR-1}, v2")
    e(f"s_mul_i32 s{sT}, s{sW}, {RPP*PB}")
    e(f"v_add_u32 v3, s{sT}, v3")
    e(f"s_mov_b32 s{sC0}, {ldb*2}")
    e(f"s_lshl_b32 s{sC1}, s{sN}, 1")
    for i in range(PB):
        e(f"v_add_u32 v5, {RPP*i}, v3")
        if Nt == 128: e("v_and_b32 v6, 3, v5")
        else: e("v_bfe_u32 v6, v5, 1, 1")
        e("v_lshlrev_b32 v6, 2, v6")
        e("v_xor_b32 v6, v6, v4")
        e(f"v_mul_lo_u32 v5, v5, s{sC0}")
        e("v_lshl_add_u32 v5, v6, 4, v5")
        e(f"v_add_u32 v5, s{sC1}, v5")
        if i: e(f"v_subrev_u32 v5, {1024*i}, v5")
        e(f"v_mov_b32 v{BDM+i}, v5")
    e(f"s_mul_i32 s{sM0}, s{sW}, {PA*1024}")
    e(f"s_mul_i32 s{sC2}, s{sW}, {PB*1024}")
    e(f"s_mul_i32 s{sBK}, s{sK0}, {64*ldb*2}")
    def dma(stage):
        r = []
        if amode == 'lds':
            r += [f"s_add_u32 m0, s{sM0}, {stage*ABYTES}", "s_nop 0"]
            for i in range(PA):
                r.append(f"buffer_load_dwordx4 v{ADM+i}, {sr(sA,4)}, s{sAK} offen offset:{i*1024} lds")
            r.append(f"s_add_u32 m0, s{sC2}, {NST*ABYTES+stage*BBYTES}")
            r.append(f"s_add_u32 s{sAK}, s{sAK}, 128")
        else:
            r += [f"s_add_u32 m0, s{sC2}, {stage*BBYTES}", "s_nop 0"]
        for i in range(PB):
            r.append(f"buffer_load_dwordx4 v{BDM+i}, {sr(sB,4)}, s{sBK} offen offset:{i*1024} lds")
        r.append(f"s_add_u32 s{sBK}, s{sBK}, {64*ldb*2}")
        return r
    def aload(t):
        r = []
        for mb in range(MB):
            for ks in range(4):
                r.append(f"buffer_load_dwordx4 {ar(xf(t,mb,ks),4)}, v{ADM+mb}, {sr(sA,4)}, s{sAK} offen offset:{ks*1024}")
        r.append(f"s_add_u32 s{sAK}, s{sAK}, 4096")
        return r
    seq = []
    def issue(lst, tag):
        for i in lst:
            if i.startswith("buffer_"): seq.append(tag)
        return lst
    def vmwait(*tags):
        idx = [i for i, t in enumerate(seq) if t in tags]
        if not idx: return None
        n = len(seq) - 1 - max(idx)
        assert n <= 63
        return n
    def pro_issue(t):
        if t < NST and t < KT: a.many(issue(dma(t), f"d{t}"))
        if amode == 'frag' and t < PF and t < KT: a.many(issue(aload(t), f"a{t}"))
    pro_issue(0)
    if OPT.get('pro_all'):
        for t in range(1, max(NST, PF)): pro_issue(t)
    e("v_and_b32 v3, 31, v2")
    e("v_lshrrev_b32 v4, 5, v2")
    if amode == 'lds':
        e("v_bfe_u32 v5, v3, 1, 3")
        e(f"s_mul_i32 s{sT}, s{sWM}, {MB*32*128}")
        for ks in range(4):
            e(f"v_add_u32 v6, {2*ks}, v4")
            e("v_xor_b32 v6, v6, v5")
            e("v_lshlrev_b32 v6, 4, v6")
            e("v_lshl_add_u32 v6, v3, 7, v6")
            e(f"v_add_u32 v{AAD+ks}, s{sT}, v6")
    e("v_bfe_u32 v5, v2, 2, 2")
    e("v_lshl_add_u32 v6, v4, 3, v5")
    e(f"v_mul_u32_u24 v6, {BROW}, v6")
    e("v_and_b32 v7, 3, v2")
    e("v_lshl_add_u32 v6, v7, 3, v6")
    e("v_bfe_u32 v7, v2, 4, 1")
    e("v_lshl_add_u32 v6, v7, 5, v6")
    if ABYTES: e(f"v_add_u32 v6, {NST*ABYTES}, v6")
    if Nt == 64: e("v_lshrrev_b32 v5, 1, v5")
    e(f"s_mul_i32 s{sT}, s{sWN}, {NBk}")
    for nb in range(NBk):
        e(f"s_add_u32 s{sC0}, s{sT}, {nb}")
        e(f"v_xor_b32 v7, s{sC0}, v5")
        e(f"v_lshl_add_u32 v{BAD+nb}, v7, 6, v6")
    sNW = 39
    e(f"s_mul_i32 s{sT}, s{sWN}, {NBk*32}")
    e(f"s_add_u32 s{sNW}, s{sN}, s{sT}")
    e(f"v_lshlrev_b32 v{VA}, 4, v2")
    def blk_off(ks_total, mb, nb, shift_n, mul2, dst):
        e(f"s_add_u32 s{dst}, s{sMB0}, {mb}")
        e(f"s_mul_i32 s{dst}, s{dst}, {ks_total}")
        e(f"s_lshr_b32 s{sC0}, s{sNW}, {shift_n}")
        e(f"s_add_u32 s{dst}, s{dst}, s{sC0}")
        e(f"s_add_u32 s{dst}, s{dst}, {mul2*nb}")
    if epi in ('final', 'sp'):
        e(f"s_lshl_b32 s{sT}, s{sMB0}, 5")
        e(f"v_add_u32 v5, s{sT}, v3")
    auxl = []
    if epi == 'final':
        e(f"s_mov_b32 s{sC0}, {ldc*2}")
        e(f"v_mul_lo_u32 v{VC}, v5, s{sC0}")
        e(f"v_lshl_add_u32 v{VC}, v4, 4, v{VC}")
        e(f"s_lshl_b32 s{sC0}, s{sNW}, 1")
        e(f"v_add_u32 v{VC}, s{sC0}, v{VC}")
    if epi == 'sp':
        e(f"v_lshlrev_b32 v{VX}, 1, v5")
    sv = len(a.lines)
    if epi == 'final':
        for mb in range(MB):
            for nb in range(NBk):
                blk_off(20, mb, nb, 5, 1, sT)
                e(f"s_lshl_b32 s{sT}, s{sT}, 11")
                for sp in range(nsplit):
                    if sp: e(f"s_add_u32 s{sT}, s{sT}, {2048*640*2}")
                    a.many([f"buffer_load_dwordx4 {vr(auxp(mb,nb,sp)+4*gq,4)}, v{VA}, {sr(sX1,4)}, s{sT} offen offset:{gq*1024}" for gq in range(2)])
                e(f"s_mov_b32 s{sT}, {mb*32*ldc*2}")
                a.many([f"buffer_load_dwordx4 {vr(auxx(mb,nb)+4*gp,4)}, v{VC}, {sr(sX2,4)}, s{sT} offen offset:{nb*64+gp*32}" for gp in range(2)])
    if epi == 'sp':
        for mb in range(MB):
            a.many([f"buffer_load_ushort v{auxb(mb)}, v{VX}, {sr(sX2,4)}, 0 offen offset:{mb*64}"])
            for nb in range(NBk):
                blk_off(108, mb, nb, 4, 2, sT)
                e(f"s_lshl_b32 s{sT}, s{sT}, 10")
                a.many([f"buffer_load_dwordx4 {vr(auxz(mb,nb)+4*gp,4)}, v{VA}, {sr(sX1,4)}, s{sT} offen offset:{gp*1024}" for gp in range(2)])
    auxl = [l.strip() for l in a.lines[sv:]]
    del a.lines[sv:]
    aux_spread = KT <= 16
    if not aux_spread:
        a.many(issue(auxl, "aux")); auxl = []
    auxg = []
    cur = []
    for ins in auxl:
        cur.append(ins)
        if ins.startswith("buffer_"): auxg.append(cur); cur = []
    if not OPT.get('pro_all'): pro_issue(1)
    for r in range(MB * NBk * 16): e(f"v_mov_b32 v{ACC+r}, 0")
    if not OPT.get('pro_all'):
        for t in range(2, max(NST, PF)): pro_issue(t)
    def reads(buf, stage, ks):
        r = []
        if amode == 'lds':
            for mb in range(MB):
                r.append(f"ds_read_b128 {vr(fa(buf,mb),4)}, v{AAD+ks} offset:{stage*ABYTES + mb*4096}")
        for nb in range(NBk):
            off = stage * BBYTES + ks * 16 * BROW
            r.append(f"ds_read_b64_tr_b16 {vr(fb(buf,nb),2)}, v{BAD+nb} offset:{off}")
            r.append(f"ds_read_b64_tr_b16 {vr(fb(buf,nb)+2,2)}, v{BAD+nb} offset:{off+4*BROW}")
        return r
    e(f"s_waitcnt vmcnt({vmwait('a0','d0')})")
    e("s_barrier")
    stamp(a, 1)
    a.many(reads(0, 0, 0))
    vq = []
    def enqueue(lst, tag):
        cur = []
        for ins in lst:
            if ins == "s_nop 0": continue
            cur.append(ins)
            if ins.startswith("buffer_"):
                vq.append((cur, tag)); cur = []
        if cur: vq[-1][0].extend(cur)
    def tile_code(kt):
        stage = kt % NST
        is_last = kt == KT - 1
        nks = last_nks if is_last else 4
        if amode == 'frag' and kt + PF < KT: enqueue(aload(kt + PF), f"a{kt+PF}")
        if auxg and kt >= 2:
            nleft = max(1, KT - 2 - kt)
            for _ in range(-(-len(auxg) // nleft)): vq.append((auxg.pop(0), "aux"))
        for ks in range(nks):
            buf = ks & 1
            mf = []
            for mb in range(MB):
                for nb in range(NBk):
                    bop = vr(fa(buf, mb), 4) if amode == 'lds' else ar(xf(kt, mb, ks), 4)
                    mf.append(f"v_mfma_f32_32x32x16_bf16 {vr(acc(mb,nb),16)}, {vr(fb(buf,nb),4)}, {bop}, {vr(acc(mb,nb),16)}")
            pre = ["s_waitcnt lgkmcnt(0)"]
            rd = []
            if ks < nks - 1:
                rd = reads(1 - buf, stage, ks + 1)
                phases_left = 3 - ks
            elif not is_last:
                assert not vq
                pre = [f"s_waitcnt vmcnt({vmwait(f'a{kt+1}', f'd{kt+1}')}) lgkmcnt(0)", "s_barrier"]
                rd = reads(0, (kt + 1) % NST, 0)
                if kt + NST < KT: enqueue(dma(stage), f"d{kt+NST}")
                phases_left = 4
            else:
                phases_left = 1
            ng = len(mf)
            take = -(-len(vq) // phases_left) if vq else 0
            take = min(take, len(vq))
            grp = [vq.pop(0) for _ in range(take)]
            gaps = [[] for _ in range(ng)]
            per_gap = max(2, -(-len(rd) // max(1, ng // 2)))
            for i, r in enumerate(rd): gaps[min(i // per_gap, ng - 1)].append(r)
            load = [len(g_) for g_ in gaps]
            pos = []
            for _ in range(take):
                gi_ = min(range(ng), key=lambda q: (load[q], -q))
                load[gi_] += 4
                pos.append(gi_)
            pos.sort()
            a.many(pre)
            gi_groups = {}
            for p_, gr in zip(pos, grp): gi_groups.setdefault(min(p_, ng - 1), []).append(gr)
            for gi in range(ng):
                e(mf[gi]); a.many(gaps[gi])
                for (ins_list, tag) in gi_groups.get(gi, []):
                    for k_, ins in enumerate(ins_list):
                        if ins.startswith("buffer_"):
                            seq.append(tag)
                            if k_ > 0 and "m0" in ins_list[k_-1] and ins.endswith("lds"): e("s_nop 0")
                        e(ins)
    per = NST if amode == 'lds' else (NST * NPF // math.gcd(NST, NPF))
    lookahead = max(NST, PF)
    G_ = (KT - lookahead) // per if KT > 16 else 0
    if G_ >= 2:
        marks = len(a.lines)
        e(f"s_mov_b32 s{sIT}, 0")
        a.raw(".p2align 6")
        a.label(f"{name}_loop")
        l0 = len(a.lines)
        for kt in range(per): tile_code(kt)
        body1 = a.lines[l0:]
        sv = len(a.lines)
        for kt in range(per, 2 * per): tile_code(kt)
        body2 = a.lines[sv:]
        del a.lines[sv:]
        if body1 != body2:
            del a.lines[marks:]
            for l in body1: a.lines.append(l)
            e(f"s_mov_b32 s{sIT}, 1")
            a.raw(".p2align 6")
            a.label(f"{name}_loop")
            for l in body2: a.lines.append(l)
            sv2 = len(a.lines)
            for kt in range(2 * per, 3 * per): tile_code(kt)
            assert a.lines[sv2:] == body2, "not steady"
            del a.lines[sv2:]
            done = 3
        else:
            done = 2
        e(f"s_add_u32 s{sIT}, s{sIT}, 1")
        e(f"s_cmp_lt_u32 s{sIT}, {G_}")
        e(f"s_cbranch_scc1 {name}_loop")
        sv = len(a.lines)
        for kt in range(done * per, G_ * per): tile_code(kt)
        del a.lines[sv:]
        start = G_ * per
        assert G_ >= done
    else:
        start = 0
    for kt in range(start, KT): tile_code(kt)
    stamp(a, 2)
    e("s_nop 15")
    e(f"s_mov_b32 s{sBK}, 0xffff0000")
    kind = epi
    def rnd(dst0, dst1, a0, a1, tmp):
        return [f"v_cvt_pk_bf16_f32 v{tmp}, v{a0}, v{a1}", f"v_lshlrev_b32 v{dst0}, 16, v{tmp}", f"v_and_b32 v{dst1}, s{sBK}, v{tmp}"]
    if kind == 'gelu':
        e(f"s_mov_b32 s{sC2}, {f32hex(0.044715)}")
        e(f"s_mov_b32 s{sAK}, {f32hex(-2.0 * math.sqrt(2.0 / math.pi) * LOG2E)}")
    if kind == 'final':
        e(f"s_mov_b32 s{sC2}, {f32hex(-LOG2E)}")
    if kind in ('sp', 'final'):
        e("s_waitcnt vmcnt(0)")
    for mb in range(MB):
        if kind == 'sp': e(f"v_lshlrev_b32 v7, 16, v{auxb(mb)}")
        for nb in range(NBk):
            skip = None
            if N % Nt:
                skip = a.newlabel(name + "_skip")
                e(f"s_add_u32 s{sT}, s{sNW}, {nb*32}")
                e(f"s_cmp_ge_u32 s{sT}, {N}")
                e(f"s_cbranch_scc1 {skip}")
            A0 = acc(mb, nb)
            if kind == 'part':
                blk_off(20, mb, nb, 5, 1, sT)
                e(f"s_lshl_b32 s{sT}, s{sT}, 11")
                e(f"s_add_u32 s{sT}, s{sT}, s{sC1}")
                for p_ in range(8): e(f"v_cvt_pk_bf16_f32 v{A0+p_}, v{A0+2*p_}, v{A0+2*p_+1}")
                for gq in range(2):
                    e(f"buffer_store_dwordx4 {vr(A0+4*gq,4)}, v{VA}, {sr(sC,4)}, s{sT} offen offset:{gq*1024}")
                if skip: a.label(skip)
                continue
            for pp in range(4):
                prs = [(A0 + 4 * pp, T0), (A0 + 4 * pp + 2, T0 + 4)]
                xs = [(A0 + 4 * pp + i, T0 + 8 + i) for i in range(4)]
                if kind in ('gelu', 'sp', 'final'):
                    for (a0, tt) in prs: a.many(rnd(a0, a0 + 1, a0, a0 + 1, tt))
                if kind == 'gelu':
                    for (x, t) in xs: e(f"v_mul_f32 v{t}, v{x}, v{x}")
                    for (x, t) in xs: e(f"v_fma_f32 v{t}, v{t}, s{sC2}, 1.0")
                    for (x, t) in xs: e(f"v_mul_f32 v{t}, v{t}, v{x}")
                    for (x, t) in xs: e(f"v_mul_f32 v{t}, s{sAK}, v{t}")
                    for (x, t) in xs: e(f"v_exp_f32 v{t}, v{t}")
                    for (x, t) in xs: e(f"v_add_f32 v{t}, 1.0, v{t}")
                    for (x, t) in xs: e(f"v_rcp_f32 v{t}, v{t}")
                    for (x, t) in xs: e(f"v_mul_f32 v{x}, v{x}, v{t}")
                elif kind == 'sp':
                    for (x, t) in xs: e(f"v_add_f32 v{x}, v{x}, v7")
                elif kind == 'final':
                    for (x, t) in xs: e(f"v_mul_f32 v{t}, s{sC2}, v{x}")
                    for (x, t) in xs: e(f"v_exp_f32 v{t}, v{t}")
                    P0 = T0 + 12
                    for sp in range(nsplit):
                        for h in range(2):
                            src = auxp(mb, nb, sp) + 2 * pp + h
                            if sp == 0:
                                e(f"v_lshlrev_b32 v{P0+2*h}, 16, v{src}"); e(f"v_and_b32 v{P0+2*h+1}, s{sBK}, v{src}")
                            else:
                                e(f"v_lshlrev_b32 v{T0+16+2*h}, 16, v{src}"); e(f"v_and_b32 v{T0+17+2*h}, s{sBK}, v{src}")
                        if sp:
                            for i in range(4): e(f"v_add_f32 v{P0+i}, v{P0+i}, v{T0+16+i}")
                    for (x, t) in xs: e(f"v_add_f32 v{t}, 1.0, v{t}")
                    for (x, t) in xs: e(f"v_rcp_f32 v{t}, v{t}")
                    for h in range(2): a.many(rnd(P0 + 2 * h, P0 + 2 * h + 1, P0 + 2 * h, P0 + 2 * h + 1, T0 + 4 * h))
                    for (x, t) in xs: e(f"v_mul_f32 v{x}, v{x}, v{t}")
                    for (a0, tt) in prs: a.many(rnd(a0, a0 + 1, a0, a0 + 1, tt))
                    for i, (x, t) in enumerate(xs): e(f"v_mul_f32 v{x}, v{x}, v{P0+i}")
                for h in range(2):
                    e(f"v_cvt_pk_bf16_f32 v{A0+2*pp+h}, v{A0+4*pp+2*h}, v{A0+4*pp+2*h+1}")
            e("s_nop 1")
            for gp in range(2):
                t = A0 + 4 * gp
                e(f"v_permlane32_swap_b32 v{t}, v{t+2}")
                e(f"v_permlane32_swap_b32 v{t+1}, v{t+3}")
            e("s_nop 1")
            if kind in ('sp', 'final'):
                XB = auxz(mb, nb) if kind == 'sp' else auxx(mb, nb)
                op = "v_mul_f32" if kind == 'sp' else "v_add_f32"
                for p2 in range(4):
                    for h in range(2):
                        d = A0 + 2 * p2 + h; tt = T0 + 4 * h
                        e(f"v_lshlrev_b32 v{tt}, 16, v{d}"); e(f"v_and_b32 v{tt+1}, s{sBK}, v{d}")
                        e(f"v_lshlrev_b32 v{tt+2}, 16, v{XB+2*p2+h}"); e(f"v_and_b32 v{tt+3}, s{sBK}, v{XB+2*p2+h}")
                    for h in range(2):
                        tt = T0 + 4 * h
                        e(f"{op} v{tt}, v{tt}, v{tt+2}"); e(f"{op} v{tt+1}, v{tt+1}, v{tt+3}")
                    for h in range(2):
                        e(f"v_cvt_pk_bf16_f32 v{A0+2*p2+h}, v{T0+4*h}, v{T0+4*h+1}")
            if kind == 'final':
                e(f"s_mov_b32 s{sT}, {mb*32*ldc*2}")
                for gp in range(2):
                    e(f"buffer_store_dwordx4 {vr(A0+4*gp,4)}, v{VC}, {sr(sC,4)}, s{sT} offen offset:{nb*64+gp*32}")
            else:
                blk_off(108 if kind == 'gelu' else 54, mb, nb, 4, 2, sT)
                e(f"s_lshl_b32 s{sT}, s{sT}, 10")
                for gp in range(2):
                    e(f"buffer_store_dwordx4 {vr(A0+4*gp,4)}, v{VA}, {sr(sC,4)}, s{sT} offen offset:{gp*1024}")
            if skip: a.label(skip)
    stamp(a, 3)
    stamp_out(a, name)
    return NV, NA, lds

def load_srds(a, specs):
    for (d, (kind, val), nb) in specs:
        a.e(f"s_load_dwordx2 s[{d}:{d+1}], s[0:1], {val*8 if kind == 'in' else 96}")
    a.e("v_lshrrev_b32 v1, 6, v0")
    a.e("v_and_b32 v2, 63, v0")
    a.e("s_nop 0")
    a.e(f"v_readfirstlane_b32 s{G.sW}, v1")
    a.e("s_waitcnt lgkmcnt(0)")
    for (d, (kind, val), nb) in specs:
        if kind == 'ws' and val:
            a.e(f"s_add_u32 s{d}, s{d}, {val}")
            a.e(f"s_addc_u32 s{d+1}, s{d+1}, 0")
        a.e(f"s_mov_b32 s{d+2}, {nb}")
        a.e(f"s_mov_b32 s{d+3}, 0x20000")

XNB = 2048 * 640 * 2; ZB = 2048 * 1728 * 2; Z2B = 2048 * 864 * 2

def simple_tile_ids(a, MT, Mt, Nt):
    MPX = MT // 8
    lg = MPX.bit_length() - 1
    e = a.e
    e(f"s_and_b32 s{G.sM}, s2, 7")
    e(f"s_lshl_b32 s{G.sM}, s{G.sM}, {lg}")
    e(f"s_lshr_b32 s{G.sT}, s2, 3")
    e(f"s_and_b32 s{G.sN}, s{G.sT}, {MPX-1}")
    e(f"s_add_u32 s{G.sM}, s{G.sM}, s{G.sN}")
    e(f"s_lshr_b32 s{G.sN}, s{G.sT}, {lg}")
    e(f"s_mul_i32 s{G.sM}, s{G.sM}, {Mt}")
    e(f"s_mul_i32 s{G.sN}, s{G.sN}, {Nt}")
    e(f"s_mov_b32 s{G.sK0}, 0")

def gen_win(a, Mt=128, Nt=128, WM=4, WN=2, NST=4, PF=3):
    name = "win_kernel"
    MT = 2048 // Mt; NT = (1728 + Nt - 1) // Nt
    kernel_header(a, name)
    a.e(f"s_cmp_ge_u32 s2, {MT*NT}"); a.e(f"s_cbranch_scc1 {name}_done")
    load_srds(a, [(G.sA, ('ws', WS_XN), XNB), (G.sB, ('in', 6), 640*1728*2), (G.sC, ('ws', WS_Z), ZB)])
    simple_tile_ids(a, MT, Mt, Nt)
    NV, NA, lds = gemm_body(a, name, 1728, 640, 10, 4, None, 1728, 'gelu', Mt, Nt, WM, WN, NST, 'frag', PF=PF, ksteps_A=40)
    a.label(f"{name}_done"); a.e("s_endpgm")
    return name, kernel_desc(name, NV, NA, 90), (MT * NT, WM * WN * 64, lds)

def gen_fin(a, Mt=128, Nt=64, WM=4, WN=1, NST=6, PF=4, nsplit=3):
    name = "fin_kernel"
    MT = 2048 // Mt; NT = 640 // Nt
    kernel_header(a, name)
    a.e(f"s_cmp_ge_u32 s2, {MT*NT}"); a.e(f"s_cbranch_scc1 {name}_done")
    load_srds(a, [(G.sA, ('ws', WS_T), Z2B), (G.sB, ('in', 9), 864*640*2), (G.sC, ('in', 10), XNB),
                  (G.sX1, ('ws', WS_S), nsplit * 2048 * 640 * 2), (G.sX2, ('in', 0), XNB)])
    simple_tile_ids(a, MT, Mt, Nt)
    NV, NA, lds = gemm_body(a, name, 640, 864, 14, 2, None, 640, 'final', Mt, Nt, WM, WN, NST, 'frag', PF=PF, ksteps_A=54, ldc=640, nsplit=nsplit)
    a.label(f"{name}_done"); a.e("s_endpgm")
    return name, kernel_desc(name, NV, NA, 90), (MT * NT, WM * WN * 64, lds)

def gen_spwo(a, NST_SP=4, NST_WO=4, PF=3):
    name = "spwo_kernel"
    e = a.e
    kernel_header(a, name)
    e("s_cmp_ge_u32 s2, 248"); e(f"s_cbranch_scc1 {name}_done")
    e("s_lshr_b32 s40, s2, 3")
    e("s_and_b32 s41, s2, 7")
    e("s_cmp_lt_u32 s40, 15"); e(f"s_cbranch_scc1 {name}_wo")
    e("s_sub_u32 s40, s40, 15")
    e("s_and_b32 s42, s41, 1")
    e("s_lshl_b32 s43, s42, 2")
    e("s_sub_u32 s44, 16, s43")
    e("s_cmp_ge_u32 s40, s44"); e(f"s_cbranch_scc1 {name}_done")
    load_srds(a, [(G.sA, ('in', 7), 2048*2048*2), (G.sB, ('ws', WS_Z2N), Z2B), (G.sC, ('ws', WS_T), Z2B),
                  (G.sX1, ('ws', WS_Z), ZB), (G.sX2, ('in', 8), 4096)])
    e(f"s_lshr_b32 s{G.sM}, s41, 1")
    e(f"s_lshl_b32 s{G.sM}, s{G.sM}, 2")
    e(f"s_and_b32 s{G.sT}, s40, 3")
    e(f"s_add_u32 s{G.sM}, s{G.sM}, s{G.sT}")
    e(f"s_lshl_b32 s{G.sM}, s{G.sM}, 7")
    e(f"s_lshr_b32 s{G.sN}, s40, 2")
    e(f"s_add_u32 s{G.sN}, s{G.sN}, s43")
    e(f"s_lshl_b32 s{G.sN}, s{G.sN}, 7")
    e(f"s_mov_b32 s{G.sK0}, 0")
    NV1, NA1, lds1 = gemm_body(a, name + "_sp", 864, 2048, 32, 4, 2048, 864, 'sp', 128, 128, 2, 2, NST_SP, 'lds')
    e("s_endpgm")
    a.label(f"{name}_wo")
    load_srds(a, [(G.sA, ('ws', WS_O), 16 << 20), (G.sB, ('in', 4), 4096*640*2), (G.sC, ('ws', WS_S), 3 * 2048 * 640 * 2)])
    e("s_mul_i32 s42, s40, 13")
    e("s_lshr_b32 s42, s42, 6")
    e("s_mul_i32 s43, s42, 5")
    e("s_sub_u32 s43, s40, s43")
    e("s_mul_i32 s45, s41, 3")
    e("s_add_u32 s45, s45, s42")
    e("s_lshr_b32 s42, s45, 3")
    e("s_and_b32 s45, s45, 7")
    e(f"s_lshl_b32 s{G.sM}, s45, 8")
    e(f"s_lshl_b32 s{G.sN}, s43, 7")
    e(f"s_mul_i32 s{G.sK0}, s42, 22")
    e(f"s_mul_i32 s44, s42, {2048*640*2}")
    mark = len(a.lines)
    NV2, NA2, lds2 = gemm_body(a, name + "_wo", 640, 4096, 22, 4, None, 640, 'part', 256, 128, 4, 1, NST_WO, 'frag', PF=PF, ksteps_A=256)
    for i in range(len(a.lines) - 1, mark, -1):
        if a.lines[i].strip() == "s_nop 15":
            a.lines.insert(i + 1, f"    s_mov_b32 s{G.sC1}, s44")
            break
    a.label(f"{name}_done"); e("s_endpgm")
    return name, kernel_desc(name, max(NV1, NV2), max(NA1, NA2), 90), (248, 256, max(lds1, lds2))
```

```python
from asmlib import *
from gemm import f32hex

def ln_math(a, D, F, X, NI, rbits, ncols, smask, sAND, sC1, sC2):
    e = a.e
    def fl(i, k): return F + i * 8 + k
    if smask:
        for k in range(4): e(f"v_cndmask_b32 v{D+(NI-1)*4+k}, 0, v{D+(NI-1)*4+k}, {smask}")
    for i in range(NI):
        for k in range(4):
            e(f"v_lshlrev_b32 v{fl(i,2*k)}, 16, v{D+i*4+k}")
            e(f"v_and_b32 v{fl(i,2*k+1)}, s{sAND}, v{D+i*4+k}")
    def reduce(rg):
        for b in range(rbits, 5):
            off = ((1 << b) << 10) | 0x1F
            e(f"ds_swizzle_b32 v{X+4}, v{rg} offset:{hex(off)}")
            e("s_waitcnt lgkmcnt(0)")
            e(f"v_add_f32 v{rg}, v{rg}, v{X+4}")
        e(f"v_mov_b32 v{X+4}, v{rg}")
        e("s_nop 1")
        e(f"v_permlane32_swap_b32 v{X+4}, v{rg}")
        e("s_nop 1")
        e(f"v_add_f32 v{rg}, v{rg}, v{X+4}")
    allf = [fl(i, k) for i in range(NI) for k in range(8)]
    e(f"v_add_f32 v{X}, v{allf[0]}, v{allf[1]}")
    e(f"v_add_f32 v{X+1}, v{allf[2]}, v{allf[3]}")
    for n, r in enumerate(allf[4:]): e(f"v_add_f32 v{X+(n&1)}, v{X+(n&1)}, v{r}")
    e(f"v_add_f32 v{X}, v{X}, v{X+1}")
    reduce(X)
    e(f"s_mov_b32 s{sC1}, {f32hex(1.0/ncols)}")
    e(f"v_mul_f32 v{X}, s{sC1}, v{X}")
    e(f"v_mov_b32 v{X+1}, 0"); e(f"v_mov_b32 v{X+2}, 0")
    for n, r in enumerate(allf):
        t = X + 5 + (n & 1)
        e(f"v_sub_f32 v{t}, v{r}, v{X}")
        if smask and n >= (NI - 1) * 8: e(f"v_cndmask_b32 v{t}, 0, v{t}, {smask}")
        e(f"v_fmac_f32 v{X+1+(n&1)}, v{t}, v{t}")
    e(f"v_add_f32 v{X+1}, v{X+1}, v{X+2}")
    reduce(X + 1)
    m = X; v = X + 1; t = X + 4
    e(f"s_mov_b32 s{sC2}, {f32hex(1e-5)}")
    e(f"v_mul_f32 v{v}, s{sC1}, v{v}")
    e(f"v_cvt_pk_bf16_f32 v{t}, v{m}, v{v}")
    e(f"v_lshlrev_b32 v{m}, 16, v{t}")
    e(f"v_and_b32 v{v}, s{sAND}, v{t}")
    e(f"v_add_f32 v{v}, s{sC2}, v{v}")
    e(f"v_cvt_pk_bf16_f32 v{t}, v{v}, v{v}")
    e(f"v_and_b32 v{v}, s{sAND}, v{t}")
    e(f"v_sqrt_f32 v{v}, v{v}")
    e("s_nop 0")
    e(f"v_cvt_pk_bf16_f32 v{t}, v{v}, v{v}")
    e(f"v_and_b32 v{v}, s{sAND}, v{t}")
    e(f"v_rcp_f32 v{v}, v{v}")
    e("s_nop 0")
    for i in range(NI):
        for k in range(4):
            a0 = fl(i, 2 * k); a1 = a0 + 1; tt = X + 5 + (k & 1)
            e(f"v_sub_f32 v{a0}, v{a0}, v{m}"); e(f"v_sub_f32 v{a1}, v{a1}, v{m}")
            e(f"v_cvt_pk_bf16_f32 v{tt}, v{a0}, v{a1}")
            e(f"v_lshlrev_b32 v{a0}, 16, v{tt}"); e(f"v_and_b32 v{a1}, s{sAND}, v{tt}")
            e(f"v_mul_f32 v{a0}, v{a0}, v{v}"); e(f"v_mul_f32 v{a1}, v{a1}, v{v}")
            e(f"v_cvt_pk_bf16_f32 v{D+i*4+k}, v{a0}, v{a1}")

def gen_ln1(a):
    name = "ln1_kernel"
    e = a.e
    kernel_header(a, name)
    e("s_cmp_ge_u32 s2, 256"); e(f"s_cbranch_scc1 {name}_done")
    e("s_load_dwordx2 s[4:5], s[0:1], 0")
    e("s_load_dwordx2 s[8:9], s[0:1], 96")
    e("v_lshrrev_b32 v1, 6, v0")
    e("v_and_b32 v2, 63, v0")
    e("s_nop 0")
    e("v_readfirstlane_b32 s20, v1")
    e("s_lshl_b32 s21, s2, 3")
    e("s_lshl_b32 s22, s20, 2")
    e("s_add_u32 s21, s21, s22")
    e("v_and_b32 v3, 3, v2")
    e("v_lshrrev_b32 v4, 2, v2")
    e("v_add_u32 v5, s21, v3")
    e("s_mov_b32 s22, 1280")
    e("v_mul_lo_u32 v6, v5, s22")
    e("v_lshl_add_u32 v6, v4, 4, v6")
    e("s_waitcnt lgkmcnt(0)")
    e(f"s_mov_b32 s6, {2048*640*2}"); e("s_mov_b32 s7, 0x20000")
    if WS_XN:
        e(f"s_add_u32 s8, s8, {WS_XN}"); e("s_addc_u32 s9, s9, 0")
    e(f"s_mov_b32 s10, {2048*640*2}"); e("s_mov_b32 s11, 0x20000")
    D = 16; F = D + 20; X = F + 40
    for i in range(5): e(f"buffer_load_dwordx4 {vr(D+4*i,4)}, v6, s[4:7], 0 offen offset:{i*256}")
    e("s_load_dwordx2 s[12:13], s[0:1], 48")
    e("s_load_dwordx2 s[16:17], s[0:1], 24")
    e("s_lshl_b32 s22, s2, 1")
    e("s_add_u32 s22, s22, s20")
    e("s_lshl_b32 s22, s22, 10")
    e("v_lshl_add_u32 v9, v2, 4, s22")
    e("s_waitcnt lgkmcnt(0)")
    e(f"s_mov_b32 s14, {640*1728*2}"); e("s_mov_b32 s15, 0x20000")
    e(f"s_mov_b32 s18, {640*4096*2}"); e("s_mov_b32 s19, 0x20000")
    for i in range(5 if OPT['prefetch'] else 0):
        e(f"s_mov_b32 s22, {i*524288}")
        e(f"buffer_load_dwordx4 v[12:15], v9, s[12:15], s22 offen")
    for i in range(10 if OPT['prefetch'] else 0):
        e(f"s_mov_b32 s22, {i*524288}")
        e(f"buffer_load_dwordx4 v[12:15], v9, s[16:19], s22 offen")
    e("v_lshrrev_b32 v7, 5, v5")
    e("s_mov_b32 s22, 40960")
    e("v_mul_lo_u32 v7, v7, s22")
    e("v_lshrrev_b32 v8, 1, v4")
    e("v_lshl_add_u32 v7, v8, 10, v7")
    e("v_and_b32 v8, 1, v4")
    e("v_lshl_add_u32 v7, v8, 9, v7")
    e("v_and_b32 v8, 31, v5")
    e("v_lshl_add_u32 v7, v8, 4, v7")
    e("s_mov_b32 s24, 0xffff0000")
    e(f"s_waitcnt vmcnt({15 if OPT['prefetch'] else 0})")
    ln_math(a, D, F, X, 5, 2, 640, None, 24, 25, 26)
    for i in range(5):
        e(f"s_mov_b32 s22, {i*8192}")
        e(f"buffer_store_dwordx4 {vr(D+4*i,4)}, v7, s[8:11], s22 offen")
    a.label(f"{name}_done")
    e("s_endpgm")
    return name, kernel_desc(name, X + 8, 0, 32), (256, 128, 0)
```

```python
class Asm:
    def __init__(self):
        self.lines = []
        self._lbl = 0
    def e(self, s):
        self.lines.append("    " + s)
    def c(self, s):
        self.lines.append("    ; " + s)
    def label(self, name):
        self.lines.append(name + ":")
    def newlabel(self, base="L"):
        self._lbl += 1
        return f"{base}_{self._lbl}"
    def raw(self, s):
        self.lines.append(s)
    def text(self):
        return "\n".join(self.lines) + "\n"
    def many(self, lst):
        for s in lst: self.e(s)

def vr(b, n=1):
    return f"v{b}" if n == 1 else f"v[{b}:{b+n-1}]"
def ar(b, n=1):
    return f"a{b}" if n == 1 else f"a[{b}:{b+n-1}]"
def sr(b, n=1):
    return f"s{b}" if n == 1 else f"s[{b}:{b+n-1}]"

def cost(ins):
    op = ins.split()[0]
    if op in ("v_exp_f32", "v_rcp_f32", "v_log_f32", "v_rsq_f32", "v_sqrt_f32"): return 8
    if op.startswith("buffer_load") and ins.rstrip().endswith("lds"): return 16
    return 4

def distribute(items, ngaps, fixed=None):
    fixed = fixed or {}
    gaps = [list(fixed.get(g, [])) for g in range(ngaps)]
    fixed_cost = [sum(cost(i) for i in gaps[g]) for g in range(ngaps)]
    total = sum(cost(i) for i in items) + sum(fixed_cost)
    per = total / ngaps
    g = 0
    acc = fixed_cost[0]
    for it in items:
        c = cost(it)
        while g < ngaps - 1 and acc + c / 2 > per * (g + 1):
            g += 1
            acc += fixed_cost[g]
        gaps[g].append(it)
        acc += c
    return gaps

def kernel_header(a, name):
    a.raw(f".globl {name}")
    a.raw(".p2align 8")
    a.raw(f".type {name},@function")
    a.label(name)

def kernel_desc(name, nvgpr_arch, nagpr, nsgpr):
    acc = (nvgpr_arch + 3) // 4 * 4
    nfv = acc + nagpr if nagpr else nvgpr_arch
    return f""".amdhsa_kernel {name}
  .amdhsa_next_free_vgpr {nfv}
  .amdhsa_next_free_sgpr {nsgpr}
  .amdhsa_accum_offset {acc}
  .amdhsa_group_segment_fixed_size 0
  .amdhsa_kernarg_size 104
  .amdhsa_user_sgpr_count 2
  .amdhsa_user_sgpr_kernarg_segment_ptr 1
  .amdhsa_system_sgpr_workgroup_id_x 1
.end_amdhsa_kernel
"""

def make_srd(a, d, base_lo, base_hi, nbytes, off_lo=None):
    if off_lo is None:
        a.e(f"s_mov_b32 s{d}, s{base_lo}")
        a.e(f"s_mov_b32 s{d+1}, s{base_hi}")
    else:
        a.e(f"s_add_u32 s{d}, s{base_lo}, {off_lo}")
        a.e(f"s_addc_u32 s{d+1}, s{base_hi}, 0")
    a.e(f"s_mov_b32 s{d+2}, {nbytes}")
    a.e(f"s_mov_b32 s{d+3}, 0x20000")

WS_XN  = 0
WS_Z   = 4 << 20
WS_Z2N = 12 << 20
WS_T   = 16 << 20
WS_S   = 20 << 20
WS_O   = 48 << 20
WS_Q   = 64 << 20

OPT = {'prefetch': True}

def code_prefetch(a, sx, vtmp, vdst, slice_sgpr, nloads=1, stride=0):
    if not OPT.get('codepf', True): return []
    lbl = a.newlabel("Lpc")
    r = [f"s_getpc_b64 s[{sx}:{sx+1}]", lbl + ":",
         f"s_sub_u32 s{sx}, s{sx}, {lbl}-ln1_kernel", f"s_subb_u32 s{sx+1}, s{sx+1}, 0",
         f"s_mov_b32 s{sx+2}, text_end-ln1_kernel", f"s_mov_b32 s{sx+3}, 0x20000",
         f"s_lshl_b32 s{slice_sgpr}, s{slice_sgpr}, 10",
         f"v_lshl_add_u32 v{vtmp}, v2, 4, s{slice_sgpr}"]
    for i in range(nloads):
        if i: r.append(f"v_add_u32 v{vtmp}, {stride}, v{vtmp}")
        r.append(f"buffer_load_dwordx4 v[{vdst}:{vdst+3}], v{vtmp}, s[{sx}:{sx+3}], 0 offen")
    for i in r:
        if i.endswith(":"): a.raw(i)
        else: a.e(i)
    return r
```

```python
from asmlib import *
from gemm import f32hex
from ln2 import ln_math
import math

class VM:
    def __init__(self): self.ops = []
    def add(self, tag, n=1): self.ops += [tag] * n
    def wait(self, *tags):
        last = max(i for i, t in enumerate(self.ops) if t in tags)
        n = len(self.ops) - 1 - last
        assert n <= 63
        return n

def gen_attn2(a, name="attn_kernel", THR_LOG2=20, stamp=False):
    NB = 2; NW = 4; NPW = 4
    KADDR = 8; VADDR = 16; KDMA = 20; VDMA = 24; L = 25; BS = 27; E = 28
    SB = 32
    def S(buf, b): return SB + (buf * NB + b) * 16
    CIB = SB + 2 * NB * 16
    def CI(b): return CIB + 16 * b
    PB = CIB + 16 * NB
    def P(buf, b): return PB + (buf * NB + b) * 8
    X0 = PB + 16 * NB
    WDMA = X0; WADDR = X0 + 4; XOFF = X0 + 8; T = X0 + 12
    LNB = T + 8
    def O(b, db): return (b * 4 + db) * 16
    QB = 128
    def Q(b, s): return QB + (b * 8 + s) * 4
    KFB = 192
    def KF(s): return KFB + 4 * s
    VFB = 224
    def VF(db, ks): return VFB + (db * 2 + ks) * 4
    NA = 256
    def QA(b, db): return SB + (b * 4 + db) * 16
    def XF(buf, b, ks): return buf * 32 + (b * 4 + ks) * 4
    def WF(buf, db): return KFB + buf * 16 + db * 4
    sK, sV, sX, sO, sWQ, sZ, sZN = 4, 8, 12, 16, 36, 40, 44
    sW, sM0, sKT, sVT, sIT, sTHR, sHEAD, sQB, sT, sT2, sWT, sB1 = 20, 21, 22, 23, 30, 31, 32, 33, 34, 35, 48, 49
    VBASE = 65536; WBASE = 98304
    slow_blocks = []
    vm = VM()
    kernel_header(a, name)
    e = a.e
    e("s_cmp_ge_u32 s2, 256")
    e(f"s_cbranch_scc1 {name}_done")
    if stamp:
        e("s_memtime s[60:61]"); e("s_memrealtime s[62:63]"); e("s_load_dwordx2 s[76:77], s[0:1], 88")
    e("s_load_dwordx4 s[24:27], s[0:1], 8")
    e("s_load_dwordx2 s[28:29], s[0:1], 96")
    e(f"s_load_dwordx2 s[{sWQ}:{sWQ+1}], s[0:1], 24")
    e("s_load_dwordx2 s[84:85], s[0:1], 56")
    e("s_load_dwordx2 s[88:89], s[0:1], 32")
    e("s_load_dwordx2 s[92:93], s[0:1], 72")
    e(f"s_and_b32 s{sT}, s2, 7")
    e(f"s_lshl_b32 s{sT}, s{sT}, 2")
    e(f"s_lshr_b32 s{sHEAD}, s2, 6")
    e(f"s_add_u32 s{sHEAD}, s{sHEAD}, s{sT}")
    e(f"s_lshr_b32 s{sQB}, s2, 3")
    e(f"s_and_b32 s{sQB}, s{sQB}, 7")
    e("v_lshrrev_b32 v1, 6, v0")
    e("v_and_b32 v2, 63, v0")
    e("s_nop 0")
    e(f"v_readfirstlane_b32 s{sW}, v1")
    e(f"s_lshl_b32 s{sT}, s{sHEAD}, 19")
    e("s_waitcnt lgkmcnt(0)")
    make_srd(a, sK, 24, 25, 524288, f"s{sT}")
    make_srd(a, sV, 26, 27, 524288, f"s{sT}")
    make_srd(a, sX, 28, 29, 2048 * 640 * 2, WS_XN if WS_XN else None)
    make_srd(a, sO, 28, 29, 16 << 20, WS_O)
    make_srd(a, sZ, 28, 29, 2048 * 1728 * 2, WS_Z)
    make_srd(a, sZN, 28, 29, 2048 * 864 * 2, WS_Z2N)
    e(f"s_mov_b32 s86, {2048*2048*2}"); e("s_mov_b32 s87, 0x20000")
    e(f"s_mov_b32 s90, {4096*640*2}"); e("s_mov_b32 s91, 0x20000")
    e(f"s_mov_b32 s94, {864*640*2}"); e("s_mov_b32 s95, 0x20000")
    e(f"s_lshl_b32 s96, s2, 2")
    e(f"s_add_u32 s96, s96, s{sW}")
    e(f"s_lshl_b32 s96, s96, 10")
    e(f"s_mov_b32 s{sWQ+2}, {640*4096*2}")
    e(f"s_mov_b32 s{sWQ+3}, 0x20000")
    LD = LNB if LNB % 4 == 0 else LNB + (4 - LNB % 4)
    LF = LD + 16; LX = LF + 32
    NV = LX + 8
    e(f"s_lshl_b32 s{sT}, s2, 3")
    e(f"s_lshl_b32 s{sT2}, s{sW}, 1")
    e(f"s_add_u32 s50, s{sT}, s{sT2}")
    e("v_and_b32 v3, 1, v2")
    e("v_add_u32 v3, s50, v3")
    e("v_lshrrev_b32 v5, 1, v2")
    e("v_lshrrev_b32 v6, 5, v3")
    e(f"s_mov_b32 s{sT}, {108*1024}")
    e(f"v_mul_lo_u32 v6, v6, s{sT}")
    e("v_lshrrev_b32 v7, 1, v5")
    e("v_lshl_add_u32 v6, v7, 10, v6")
    e("v_and_b32 v7, 1, v5")
    e("v_lshl_add_u32 v6, v7, 9, v6")
    e("v_and_b32 v7, 31, v3")
    e("v_lshl_add_u32 v6, v7, 4, v6")
    e(f"v_mov_b32 v{LX+7}, v6")
    e(f"s_mov_b32 s{sT}, 1728")
    e(f"v_mul_lo_u32 v3, v3, s{sT}")
    e("v_lshl_add_u32 v3, v5, 4, v3")
    e("v_cmp_gt_u32 s[54:55], 12, v5")
    e(f"v_mov_b32 v{T+4}, 0x7fff0000")
    e("s_nop 0")
    e(f"v_cndmask_b32 v{T+4}, v{T+4}, v3, s[54:55]")
    def zloads():
        r = []
        for i in range(4):
            r.append(f"s_mov_b32 s58, {(54+16*i)*1024}")
            r.append(f"buffer_load_dwordx4 {vr(LD+4*i,4)}, v{LX+7}, {sr(sZ,4)}, s58 offen")
        return r
    e(f"s_mul_i32 s{sM0}, s{sW}, {NPW*1024}")
    e(f"s_mov_b32 s{sTHR}, {hex((127 + THR_LOG2) << 23)}")
    e(f"s_lshl_b32 s{sT}, s{sQB}, 8")
    e(f"s_lshl_b32 s{sT2}, s{sW}, 6")
    e(f"s_add_u32 s51, s{sT}, s{sT2}")
    e("v_lshrrev_b32 v4, 5, v2")
    e(f"v_lshlrev_b32 v{XOFF}, 4, v2")
    e(f"s_lshr_b32 s{sT}, s51, 5")
    e(f"s_mul_i32 s57, s{sT}, 40960")
    e(f"s_add_u32 s{sB1}, s57, 40960")
    def xload(t):
        r = []
        for b in range(2):
            for ks in range(4):
                so = "s57" if b == 0 else f"s{sB1}"
                r.append(f"buffer_load_dwordx4 {ar(XF(t%4,b,ks),4)}, v{XOFF}, {sr(sX,4)}, {so} offen offset:{ks*1024}")
        r += ["s_add_u32 s57, s57, 4096", f"s_add_u32 s{sB1}, s{sB1}, 4096"]
        return r
    e("v_lshrrev_b32 v5, 4, v2")
    e("v_and_b32 v6, 15, v2")
    e(f"s_lshl_b32 s{sT}, s{sW}, 4")
    e(f"v_add_u32 v7, s{sT}, v5")
    for i in range(NPW):
        e(f"v_add_u32 v1, {4*i}, v7")
        e("v_and_b32 v1, 15, v1")
        e("v_xor_b32 v1, v1, v6")
        e("v_lshlrev_b32 v1, 4, v1")
        e(f"v_lshl_add_u32 v{KDMA+i}, v7, 8, v1")
    e("v_lshlrev_b32 v1, 2, v5")
    e("v_xor_b32 v1, v1, v6")
    e("v_lshlrev_b32 v1, 4, v1")
    e(f"v_lshl_add_u32 v{VDMA}, v7, 8, v1")
    e(f"s_lshl_b32 s{sT}, s{sHEAD}, 8")
    e(f"v_add_u32 v1, s{sT}, v1")
    e("v_lshl_add_u32 v1, v7, 13, v1")
    for i in range(NPW):
        e(f"v_add_u32 v{WDMA+i}, {i*(4*8192-1024)}, v1")
    e(f"s_mov_b32 s{sKT}, 0"); e(f"s_mov_b32 s{sVT}, 0"); e(f"s_mov_b32 s{sWT}, 0")
    def dma_k(stage):
        r = [f"s_add_u32 m0, s{sM0}, {stage*16384}", "s_nop 0"]
        for i in range(NPW):
            r.append(f"buffer_load_dwordx4 v{KDMA+i}, {sr(sK,4)}, s{sKT} offen offset:{i*1024} lds")
        r.append(f"s_add_u32 s{sKT}, s{sKT}, 16384")
        return r
    def dma_v(stage):
        r = [f"s_add_u32 m0, s{sM0}, {VBASE + stage*16384}", "s_nop 0"]
        for i in range(NPW):
            r.append(f"buffer_load_dwordx4 v{VDMA}, {sr(sV,4)}, s{sVT} offen offset:{i*1024} lds")
        r.append(f"s_add_u32 s{sVT}, s{sVT}, 16384")
        return r
    def dma_w(t):
        r = [f"s_add_u32 m0, s{sM0}, {WBASE + (t%4)*16384}", "s_nop 0"]
        for i in range(NPW):
            r.append(f"buffer_load_dwordx4 v{WDMA+i}, {sr(sWQ,4)}, s{sWT} offen offset:{i*1024} lds")
        r.append(f"s_add_u32 s{sWT}, s{sWT}, {64*8192}")
        return r
    def issue(lst, tag):
        for i in lst:
            if i.startswith("buffer_"): vm.add(tag)
        return lst
    a.many(issue(dma_w(0), "w0")); a.many(issue(xload(0), "x0"))
    a.many(issue(dma_w(1), "w1")); a.many(issue(xload(1), "x1"))
    e("v_and_b32 v1, 31, v2")
    e("v_and_b32 v5, 15, v2")
    for s in range(8):
        e(f"v_add_u32 v6, {2*s}, v4")
        e("v_xor_b32 v6, v6, v5")
        e("v_lshlrev_b32 v6, 4, v6")
        e(f"v_lshl_add_u32 v{KADDR+s}, v1, 8, v6")
    e("v_lshrrev_b32 v6, 2, v5")
    e("v_lshl_add_u32 v7, v4, 2, v6")
    e("v_lshlrev_b32 v7, 8, v7")
    e("v_and_b32 v1, 3, v2")
    e("v_lshl_add_u32 v7, v1, 3, v7")
    e("v_bfe_u32 v1, v2, 4, 1")
    e("v_lshl_add_u32 v7, v1, 5, v7")
    e(f"v_add_u32 v7, {VBASE}, v7")
    for db in range(4):
        e(f"v_xor_b32 v1, {db}, v6")
        e(f"v_lshl_add_u32 v{VADDR+db}, v1, 6, v7")
    e("v_lshl_add_u32 v7, v4, 3, v6")
    e("v_lshlrev_b32 v7, 8, v7")
    e("v_and_b32 v1, 1, v2")
    e("v_lshl_add_u32 v7, v1, 4, v7")
    e("v_bfe_u32 v1, v2, 1, 1")
    e("v_lshl_add_u32 v7, v1, 3, v7")
    e("v_bfe_u32 v1, v2, 4, 1")
    e("v_lshl_add_u32 v7, v1, 5, v7")
    e(f"v_add_u32 v7, {WBASE}, v7")
    for db in range(4):
        e(f"v_xor_b32 v1, {db}, v6")
        e(f"v_lshl_add_u32 v{WADDR+db}, v1, 6, v7")
    e("s_mov_b32 s52, 0xffff0000")
    e(f"s_mov_b32 s59, {f32hex(math.log2(math.e) / math.sqrt(128.0))}")
    tmp = Asm()
    ln_math(tmp, LD, LF, LX, 4, 1, 864, "s[54:55]", 52, 53, 56)
    lnq = ["WAITZ"] + [l.strip() for l in tmp.lines]
    for i in range(4):
        lnq.append(f"buffer_store_dwordx4 {vr(LD+4*i,4)}, v{3 if i < 3 else T+4}, {sr(sZN,4)}, 0 offen offset:{i*512}")
    for r in range(32): lnq.append(f"v_accvgpr_write_b32 a{VFB+r}, 0")
    if stamp: e("s_memtime s[64:65]")
    def wread(buf, t, ks):
        r = []
        for db in range(4):
            off = (t % 4) * 16384 + ks * 4096
            r.append(f"ds_read_b64_tr_b16 {ar(WF(buf,db),2)}, v{WADDR+db} offset:{off}")
            r.append(f"ds_read_b64_tr_b16 {ar(WF(buf,db)+2,2)}, v{WADDR+db} offset:{off+1024}")
        return r
    def wread_db(buf, t, db):
        r = []
        for ks in range(4):
            off = (t % 4) * 16384 + ks * 4096
            r.append(f"ds_read_b64_tr_b16 {ar(WF(buf,ks),2)}, v{WADDR+db} offset:{off}")
            r.append(f"ds_read_b64_tr_b16 {ar(WF(buf,ks)+2,2)}, v{WADDR+db} offset:{off+1024}")
        return r
    def qconv(db):
        r = []
        for b in range(2):
            for u in range(2):
                base = QA(b, db) + 8 * u
                for i in range(8): r.append(f"v_mul_f32 v{base+i}, s59, v{base+i}")
                for i in range(4): r.append(f"v_cvt_pk_bf16_f32 v{base+i}, v{base+2*i}, v{base+2*i+1}")
                for i in range(4): r.append(f"v_accvgpr_write_b32 a{Q(b,2*db+u)+i}, v{base+i}")
        return r
    vq = []
    def enqueue(lst, tag):
        cur = []
        for ins in lst:
            if ins == "s_nop 0": continue
            cur.append(ins)
            if ins.startswith("buffer_"):
                vq.append((cur, tag)); cur = []
        if cur: vq[-1][0].extend(cur)
    e(f"s_waitcnt vmcnt({vm.wait('x0','w0')})")
    e("s_barrier")
    a.many(wread(0, 0, 0))
    LA = OPT.get('la', 3)
    extra_dma = {2: [(zloads(), "z")], 6: [(dma_k(0), "k0"), (dma_k(1), "k1")], 7: [(dma_v(0), "v0"), (dma_k(2), "k2"), (dma_v(1), "v1")] + ([(dma_k(3), "k3")] if LA == 4 else [])}
    fq = []
    for t in range(10):
        if t == 0:
            enqueue(dma_w(2), "w2"); enqueue(xload(2), "x2"); enqueue(dma_w(3), "w3")
        if t + 3 < 10: enqueue(xload(t + 3), f"x{t+3}")
        for (lst, tag) in extra_dma.get(t, []): enqueue(lst, tag)
        if t == 4: fq += lnq
        if t == 8: fq += [f"v_accvgpr_write_b32 a{r}, 0" for r in range(64, 128)]
        if t == 9: fq += [f"v_accvgpr_write_b32 a{r}, 0" for r in range(0, 32)]
        for ph in range(4):
            buf = ph & 1
            mf = []
            if t < 9:
                ks = ph
                for db in range(4):
                    for b in range(2):
                        c = "0" if (t == 0 and ks == 0) else vr(QA(b, db), 16)
                        mf.append(f"v_mfma_f32_32x32x16_bf16 {vr(QA(b,db),16)}, {ar(WF(buf,db),4)}, {ar(XF(t%4,b,ks),4)}, {c}")
            else:
                db = ph
                for ks in range(4):
                    for b in range(2):
                        mf.append(f"v_mfma_f32_32x32x16_bf16 {vr(QA(b,db),16)}, {ar(WF(buf,ks),4)}, {ar(XF(t%4,b,ks),4)}, {vr(QA(b,db),16)}")
                if ph >= 2: fq += qconv(ph - 2)
            pre = ["s_waitcnt lgkmcnt(0)"]
            rd = []
            if ph < 3:
                rd = wread(1 - buf, t, ph + 1) if t < 9 else wread_db(1 - buf, t, ph + 1)
                left = 3 - ph
            elif t < 9:
                assert not vq
                pre = [f"s_waitcnt vmcnt({vm.wait(f'x{t+1}', f'w{t+1}')}) lgkmcnt(0)", "s_barrier"]
                rd = wread(0, t + 1, 0) if t + 1 < 9 else wread_db(0, t + 1, 0)
                if t + 4 < 10: enqueue(dma_w(t + 4), f"w{t+4}")
                left = 4
            else:
                left = 1
            take = min(len(vq), -(-len(vq) // left)) if vq else 0
            grp = [vq.pop(0) for _ in range(take)]
            a.many(pre)
            gpos = {}
            for i_, gr in enumerate(grp): gpos.setdefault(7 - (take - 1 - i_) if take <= 8 else i_ * 8 // take, []).append(gr)
            for g in range(8):
                e(mf[g])
                budget = 24
                for r_ in rd[2*g:2*g+2]: e(r_); budget -= 4
                for (ins_list, tag) in gpos.get(g, []):
                    for k_, ins in enumerate(ins_list):
                        if ins.startswith("buffer_"):
                            vm.add(tag)
                            if k_ > 0 and "m0" in ins_list[k_-1] and ins.endswith("lds"): e("s_nop 0")
                        e(ins)
                    budget -= 16
                while fq and budget > 0:
                    ins = fq.pop(0)
                    if ins == "WAITZ": ins = f"s_waitcnt vmcnt({vm.wait('z')})"
                    if ins.startswith("buffer_"): vm.add("zs"); budget -= 12
                    e(ins); budget -= cost(ins)
    e(f"s_waitcnt vmcnt({vm.wait('k0','k1','v0','k2','v1','k3')})")
    e("s_barrier")
    if LA == 4: a.many(issue(dma_v(2), "v2"))
    assert not any(i.startswith("buffer_") or i == "WAITZ" for i in fq)
    a.many(fq)
    for r in range(32, 64): e(f"v_accvgpr_write_b32 a{r}, 0")
    a.many(qconv(2)); a.many(qconv(3))
    for b in range(NB):
        for r in range(8): e(f"v_mov_b32 v{P(1,b)+r}, 0")
        e(f"v_mov_b32 v{L+b}, 0")
    def kread(s, ht):
        off = ((ht >> 1) % 4) * 16384 + (ht & 1) * 8192
        return f"ds_read_b128 {ar(KF(s),4)}, v{KADDR+s} offset:{off}"
    def vread(db, ks, ht):
        off = ((ht >> 1) % 4) * 16384 + (ht & 1) * 8192 + ks * 4096
        return [f"ds_read_b64_tr_b16 {ar(VF(db,ks),2)}, v{VADDR+db} offset:{off}",
                f"ds_read_b64_tr_b16 {ar(VF(db,ks)+2,2)}, v{VADDR+db} offset:{off+2048}"]
    for s in range(8): e(kread(s, 0))
    e("s_waitcnt lgkmcnt(0)")
    for b in range(NB):
        for s in range(8):
            c = "0" if s == 0 else vr(S(0,b),16)
            e(f"v_mfma_f32_32x32x16_bf16 {vr(S(0,b),16)}, {ar(KF(s),4)}, {ar(Q(b,s),4)}, {c}")
    for s in range(8): e(kread(s, 1))
    e("s_nop 15"); e("s_nop 3")
    def rowmax(dst, tmp, base):
        r = [f"v_max3_f32 v{dst}, v{base}, v{base+1}, v{base+2}"]
        for i in range(3, 15, 2):
            r.append(f"v_max3_f32 v{dst}, v{dst}, v{base+i}, v{base+i+1}")
        r.append(f"v_max_f32 v{dst}, v{dst}, v{base+15}")
        r += [f"v_mov_b32 v{tmp}, v{dst}", "s_nop 1", f"v_permlane32_swap_b32 v{tmp}, v{dst}", "s_nop 1",
              f"v_max_f32 v{dst}, v{dst}, v{tmp}"]
        return r
    for b in range(NB):
        a.many(rowmax(E, E+1, S(0,b)))
        for r in range(16):
            e(f"v_sub_f32 v{CI(b)+r}, 0, v{E}")
            e(f"v_sub_f32 v{S(0,b)+r}, v{S(0,b)+r}, v{E}")
    e(f"s_mov_b32 s{sIT}, 0")
    e("s_waitcnt lgkmcnt(0)")
    e("s_nop 1")

    def sm_list(p, b):
        sb = S(p, b); pb = P(p, b)
        def ea(q): return E + 2 * (q % 2)
        def eb(q): return E + 2 * (q % 2) + 1
        r = [f"v_exp_f32 v{ea(0)}, v{sb}", f"v_exp_f32 v{eb(0)}, v{sb+1}"]
        for q in range(1, 9):
            pq = q - 1
            if q < 8: r.append(f"v_exp_f32 v{ea(q)}, v{sb+2*q}")
            if pq == 0:
                r.append(f"v_add_f32 v{BS}, v{ea(0)}, v{eb(0)}")
            else:
                r.append(f"v_add_f32 v{BS}, v{BS}, v{ea(pq)}")
                r.append(f"v_add_f32 v{BS}, v{BS}, v{eb(pq)}")
            if q < 8: r.append(f"v_exp_f32 v{eb(q)}, v{sb+2*q+1}")
            r.append(f"v_cvt_pk_bf16_f32 v{pb+pq}, v{ea(pq)}, v{eb(pq)}")
        return r
    def slow(lbl, ret, p, b):
        r = [lbl + ":"]
        x = ["s_nop 15", "s_nop 15"]
        x += rowmax(E, E+1, S(p, b))
        x += [f"v_ceil_f32 v{E}, v{E}", f"v_max_f32 v{E}, 0, v{E}",
              f"v_cvt_i32_f32 v{E+1}, v{E}", f"v_sub_u32 v{E+1}, 0, v{E+1}",
              f"v_ldexp_f32 v{E+1}, 1.0, v{E+1}"]
        for rr in range(64):
            x += [f"v_accvgpr_read_b32 v{E+2}, a{O(b,0)+rr}", f"v_mul_f32 v{E+2}, v{E+2}, v{E+1}",
                  f"v_accvgpr_write_b32 a{O(b,0)+rr}, v{E+2}"]
        x.append(f"v_mul_f32 v{L+b}, v{L+b}, v{E+1}")
        for rr in range(16):
            x += [f"v_sub_f32 v{CI(b)+rr}, v{CI(b)+rr}, v{E}", f"v_sub_f32 v{S(p,b)+rr}, v{S(p,b)+rr}, v{E}",
                  f"v_sub_f32 v{S(1-p,b)+rr}, v{S(1-p,b)+rr}, v{E}"]
        x += sm_list(p, b)
        x += ["s_nop 1", f"s_branch {ret}"]
        return r + ["    " + i for i in x]
    if stamp:
        e("s_memtime s[66:67]"); e("s_waitcnt lgkmcnt(0)")
    a.raw(".p2align 6")
    a.label(f"{name}_loop")
    for uu in range(8):
        p = uu & 1
        a.c(f"==== slot {uu}")
        for b in range(NB):
            mf = []
            for s in range(8):
                c = vr(CI(b),16) if s == 0 else vr(S(1-p,b),16)
                mf.append(f"v_mfma_f32_32x32x16_bf16 {vr(S(1-p,b),16)}, {ar(KF(s),4)}, {ar(Q(b,s),4)}, {c}")
            pv = [(db, ks) for ks in range(2) for db in range(4)]
            for (db, ks) in pv:
                mf.append(f"v_mfma_f32_32x32x16_bf16 {ar(O(b,db),16)}, {ar(VF(db,ks),4)}, {vr(P(1-p,b)+4*ks,4)}, {ar(O(b,db),16)}")
            fixed = {g: [] for g in range(16)}
            tail = {g: [] for g in range(16)}
            if b == NB - 1:
                for s in range(8): fixed[s].append(kread(s, uu + 2))
                for i, (db, ks) in enumerate(pv): fixed[8 + i] += vread(db, ks, uu)
                fixed[10].insert(0, "s_waitcnt lgkmcnt(4)")
            if b == 0:
                if p == 0:
                    tail[7] += [f"s_waitcnt vmcnt({(3 if LA == 4 else 2)*NPW}) lgkmcnt(0)", "s_barrier"]
                    d = dma_k(((uu >> 1) + LA) % 4)
                else:
                    tail[7] += [f"s_waitcnt lgkmcnt(0)"]
                    d = dma_v(((uu >> 1) + LA - 1) % 4)
                fixed[8].append(d[0])
                for i in range(NPW): fixed[9 + i].append(d[2 + i])
                fixed[15].append(d[-1])
                if p == 1 and uu < 6 and OPT['prefetch']:
                    fixed[14].append(f"buffer_load_dwordx4 {vr(T,4)}, v{XOFF}, s[{84+4*(uu>>1)}:{87+4*(uu>>1)}], s96 offen")
                if uu == 7: fixed[14].append("s_add_u32 s96, s96, 0x100000")
            lbl = f"{name}_slow_{uu}_{b}"; ret = f"{name}_ret_{uu}_{b}"
            items = sm_list(p, b)
            chk = [f"v_cmp_lt_f32 vcc, s{sTHR}, v{BS}", f"s_cbranch_vccnz {lbl}", ret + ":", f"v_add_f32 v{L+b}, v{L+b}, v{BS}"]
            if uu == 7 and b == NB - 1:
                chk += [f"s_add_u32 s{sIT}, s{sIT}, 1", f"s_cmp_lt_u32 s{sIT}, 8", f"s_cbranch_scc1 {name}_loop"]
            gaps = distribute(items + ["s_nop 0"] * 3, 16, fixed)
            gaps = [[i for i in g if i != "s_nop 0"] for g in gaps]
            for g in range(16):
                e(mf[g])
                for i in gaps[g]: e(i)
                for i in tail[g]: e(i)
            for i in chk:
                if i.endswith(":"): a.raw(i)
                else: e(i)
            slow_blocks += slow(lbl, ret, p, b)
    if stamp: e("s_memtime s[68:69]")
    e("s_lshr_b32 s96, s2, 3")
    e("s_lshl_b32 s96, s96, 2")
    e(f"s_add_u32 s96, s96, s{sW}")
    code_prefetch(a, 84, 1, T, 96)
    e("s_waitcnt lgkmcnt(0)")
    for b in range(NB):
        for ks in range(2):
            for db in range(4):
                e(f"v_mfma_f32_32x32x16_bf16 {ar(O(b,db),16)}, {ar(VF(db,ks),4)}, {vr(P(1,b)+4*ks,4)}, {ar(O(b,db),16)}")
    for b in range(NB):
        e(f"v_mov_b32 v{E}, v{L+b}")
        e("s_nop 1")
        e(f"v_permlane32_swap_b32 v{E}, v{L+b}")
        e("s_nop 1")
        e(f"v_add_f32 v{L+b}, v{L+b}, v{E}")
        e(f"v_rcp_f32 v{L+b}, v{L+b}")
    e(f"s_lshr_b32 s{sT}, s51, 5")
    e(f"s_lshl_b32 s{sT}, s{sT}, 18")
    e(f"s_lshl_b32 s{sT2}, s{sHEAD}, 13")
    e(f"s_add_u32 s{sT}, s{sT}, s{sT2}")
    e("s_nop 7")
    TT = S(0, 0)
    for b in range(NB):
        for db in range(4):
            for gp in range(2):
                t = TT + ((db * 2 + gp) % 4) * 12
                for i in range(8): e(f"v_accvgpr_read_b32 v{t+4+i}, a{O(b,db)+8*gp+i}")
                for i in range(8): e(f"v_mul_f32 v{t+4+i}, v{t+4+i}, v{L+b}")
                for i in range(4): e(f"v_cvt_pk_bf16_f32 v{t+i}, v{t+4+2*i}, v{t+4+2*i+1}")
                e("s_nop 1")
                e(f"v_permlane32_swap_b32 v{t}, v{t+2}")
                e(f"v_permlane32_swap_b32 v{t+1}, v{t+3}")
                k = db * 2 + gp
                if k % 4 == 0: e(f"s_add_u32 s{sT2}, s{sT}, {b*262144 + k*1024}")
                else: e("s_nop 0")
                e(f"buffer_store_dwordx4 {vr(t,4)}, v{XOFF}, {sr(sO,4)}, s{sT2} offen offset:{(k%4)*1024}")
    if stamp:
        e("s_waitcnt vmcnt(0)")
        e("s_memtime s[70:71]"); e("s_memrealtime s[72:73]")
        e("s_waitcnt lgkmcnt(0)")
        e("s_mov_b32 s78, 256"); e("s_mov_b32 s79, 0x20000")
        e(f"s_cmp_lg_u32 s{sW}, 0"); e(f"s_cbranch_scc1 {name}_done")
        e("s_and_b32 s80, s2, 0x3f"); e("s_cmp_lg_u32 s80, 5"); e(f"s_cbranch_scc1 {name}_done")
        e("s_lshr_b32 s80, s2, 6"); e("s_lshl_b32 s80, s80, 6")
        for i in range(14): e(f"v_mov_b32 v{32+i}, s{60+i}")
        e("v_mov_b32 v1, 0")
        e("v_cmp_eq_u32 vcc, 0, v2")
        e("s_and_saveexec_b64 s[82:83], vcc")
        for i in range(4): e(f"buffer_store_dwordx4 v[{32+4*i}:{35+4*i}], v1, s[76:79], s80 offen offset:{16*i}")
        e("s_waitcnt vmcnt(0)")
    a.label(f"{name}_done")
    e("s_endpgm")
    for l in slow_blocks: a.raw(l)
    return kernel_desc(name, NV, NA, 100), (256, 256, 163840)
```

```python
from asmlib import *
from gemm import f32hex
import math

LOG2E = math.log2(math.e)
STAMP = {"on": False}
def stamp(a, k):
    if STAMP["on"]:
        a.e(f"s_memtime s[{60+2*k}:{61+2*k}]")
def stamp_out(a, name):
    if not STAMP["on"]: return
    e = a.e
    lbl = a.newlabel(name + "_nost")
    e("s_waitcnt vmcnt(0)")
    e("s_memtime s[68:69]")
    e("s_load_dwordx2 s[76:77], s[0:1], 88")
    e("s_waitcnt lgkmcnt(0)")
    e("s_mov_b32 s78, 256"); e("s_mov_b32 s79, 0x20000")
    e(f"s_cmp_lg_u32 s{G.sW}, 0"); e(f"s_cbranch_scc1 {lbl}")
    e("s_and_b32 s80, s2, 0x3f"); e("s_cmp_lg_u32 s80, 5"); e(f"s_cbranch_scc1 {lbl}")
    e("s_lshr_b32 s80, s2, 6"); e("s_lshl_b32 s80, s80, 6")
    for i in range(12): e(f"v_mov_b32 v{32+i}, s{60+i}")
    e("v_mov_b32 v1, 0")
    e("v_cmp_eq_u32 vcc, 0, v2")
    e("s_and_saveexec_b64 s[82:83], vcc")
    for i in range(3): e(f"buffer_store_dwordx4 v[{32+4*i}:{35+4*i}], v1, s[76:79], s80 offen offset:{16*i}")
    e("s_waitcnt vmcnt(0)")
    a.label(lbl)

class G:
    sA, sB, sC, sX1, sX2 = 4, 8, 12, 16, 20
    sW, sM0, sAK, sBK, sIT, sM, sN, sT, sWM, sWN, sC0, sC1, sC2, sK0, sMB0 = 24, 25, 26, 27, 28, 29, 30, 31, 32, 33, 34, 35, 36, 37, 38

def gemm_body(a, name, N, Kfull, KT, last_nks, lda, ldb, epi, Mt, Nt, WM, WN, NST, amode, PF=3, ksteps_A=None, ldc=None, ldx=None, nsplit=1):
    g = G
    NW = WM * WN
    MB = Mt // WM // 32
    NBk = Nt // WN // 32
    ABYTES = Mt * 128 if amode == 'lds' else 0
    BBYTES = 64 * Nt * 2
    PA = Mt // 8 // NW if amode == 'lds' else 0
    PB = BBYTES // 1024 // NW
    assert PA <= 4 and 1 <= PB <= 4
    AFL = MB * 4 if amode == 'frag' else 0
    BROW = Nt * 2
    assert Nt in (64, 128)
    RPP = 1024 // BROW
    lds = (ABYTES + BBYTES) * NST
    assert NST * ABYTES <= 65536 and NST * BBYTES <= 65536
    AAD = 8; BAD = 12; ADM = 16; BDM = 20; VC = 24; VX = 25; VA = 26; T0 = 28
    ACC = 48
    def acc(mb, nb): return ACC + (mb * NBk + nb) * 16
    FR = ACC + MB * NBk * 16
    FA = MB if amode == 'lds' else 0
    def fa(buf, mb): return FR + buf * (FA + NBk) * 4 + mb * 4
    def fb(buf, nb): return FR + buf * (FA + NBk) * 4 + FA * 4 + nb * 4
    NV = FR + 2 * (FA + NBk) * 4
    AUX = NV
    if epi == 'sp': NV += MB * NBk * 8 + MB
    if epi == 'final': NV += MB * NBk * (8 * nsplit + 8)
    def auxz(mb, nb): return AUX + (mb * NBk + nb) * 8
    def auxb(mb): return AUX + MB * NBk * 8 + mb
    def auxp(mb, nb, sp): return AUX + ((mb * NBk + nb) * nsplit + sp) * 8
    def auxx(mb, nb): return AUX + MB * NBk * nsplit * 8 + (mb * NBk + nb) * 8
    NPF = PF + 1
    def xf(t, mb, ks): return ((t % NPF) * MB + mb) * 16 + ks * 4
    NA = NPF * MB * 16 if amode == 'frag' else 0
    sA, sB, sC, sX1, sX2 = g.sA, g.sB, g.sC, g.sX1, g.sX2
    sW, sM0, sAK, sBK, sIT, sM, sN, sT, sWM, sWN, sC0, sC1, sC2, sK0, sMB0 = g.sW, g.sM0, g.sAK, g.sBK, g.sIT, g.sM, g.sN, g.sT, g.sWM, g.sWN, g.sC0, g.sC1, g.sC2, g.sK0, g.sMB0
    e = a.e
    stamp(a, 0)
    e(f"s_and_b32 s{sWN}, s{sW}, {WN-1}")
    e(f"s_lshr_b32 s{sWM}, s{sW}, {WN.bit_length()-1}")
    e(f"s_lshr_b32 s{sMB0}, s{sM}, 5")
    e(f"s_mul_i32 s{sT}, s{sWM}, {MB}")
    e(f"s_add_u32 s{sMB0}, s{sMB0}, s{sT}")
    if amode == 'lds':
        e("v_lshrrev_b32 v3, 3, v2")
        e("v_and_b32 v4, 7, v2")
        e(f"s_mul_i32 s{sT}, s{sW}, {8*PA}")
        e(f"v_add_u32 v3, s{sT}, v3")
        e(f"s_mov_b32 s{sC0}, {lda*2}")
        for i in range(PA):
            e(f"v_add_u32 v5, {8*i}, v3")
            e("v_bfe_u32 v6, v5, 1, 3")
            e("v_xor_b32 v6, v6, v4")
            e(f"v_add_u32 v5, s{sM}, v5")
            e(f"v_mul_lo_u32 v5, v5, s{sC0}")
            e("v_lshl_add_u32 v5, v6, 4, v5")
            if i: e(f"v_subrev_u32 v5, {1024*i}, v5")
            e(f"v_mov_b32 v{ADM+i}, v5")
        e(f"s_lshl_b32 s{sAK}, s{sK0}, 7")
    else:
        for mb in range(MB):
            e(f"v_lshlrev_b32 v{ADM+mb}, 4, v2")
            if mb: e(f"v_add_u32 v{ADM+mb}, {mb*ksteps_A*1024}, v{ADM+mb}")
        e(f"s_mul_i32 s{sAK}, s{sMB0}, {ksteps_A*1024}")
        e(f"s_lshl_b32 s{sT}, s{sK0}, 12")
        e(f"s_add_u32 s{sAK}, s{sAK}, s{sT}")
    CPR = 64 // RPP
    lgc = CPR.bit_length() - 1
    e(f"v_lshrrev_b32 v3, {lgc}, v2")
    e(f"v_and_b32 v4, {CPR-1}, v2")
    e(f"s_mul_i32 s{sT}, s{sW}, {RPP*PB}")
    e(f"v_add_u32 v3, s{sT}, v3")
    e(f"s_mov_b32 s{sC0}, {ldb*2}")
    e(f"s_lshl_b32 s{sC1}, s{sN}, 1")
    for i in range(PB):
        e(f"v_add_u32 v5, {RPP*i}, v3")
        if Nt == 128: e("v_and_b32 v6, 3, v5")
        else: e("v_bfe_u32 v6, v5, 1, 1")
        e("v_lshlrev_b32 v6, 2, v6")
        e("v_xor_b32 v6, v6, v4")
        e(f"v_mul_lo_u32 v5, v5, s{sC0}")
        e("v_lshl_add_u32 v5, v6, 4, v5")
        e(f"v_add_u32 v5, s{sC1}, v5")
        if i: e(f"v_subrev_u32 v5, {1024*i}, v5")
        e(f"v_mov_b32 v{BDM+i}, v5")
    e(f"s_mul_i32 s{sM0}, s{sW}, {PA*1024}")
    e(f"s_mul_i32 s{sC2}, s{sW}, {PB*1024}")
    e(f"s_mul_i32 s{sBK}, s{sK0}, {64*ldb*2}")
    def dma(stage):
        r = []
        if amode == 'lds':
            r += [f"s_add_u32 m0, s{sM0}, {stage*ABYTES}", "s_nop 0"]
            for i in range(PA):
                r.append(f"buffer_load_dwordx4 v{ADM+i}, {sr(sA,4)}, s{sAK} offen offset:{i*1024} lds")
            r.append(f"s_add_u32 m0, s{sC2}, {NST*ABYTES+stage*BBYTES}")
            r.append(f"s_add_u32 s{sAK}, s{sAK}, 128")
        else:
            r += [f"s_add_u32 m0, s{sC2}, {stage*BBYTES}", "s_nop 0"]
        for i in range(PB):
            r.append(f"buffer_load_dwordx4 v{BDM+i}, {sr(sB,4)}, s{sBK} offen offset:{i*1024} lds")
        r.append(f"s_add_u32 s{sBK}, s{sBK}, {64*ldb*2}")
        return r
    def aload(t):
        r = []
        for mb in range(MB):
            for ks in range(4):
                r.append(f"buffer_load_dwordx4 {ar(xf(t,mb,ks),4)}, v{ADM+mb}, {sr(sA,4)}, s{sAK} offen offset:{ks*1024}")
        r.append(f"s_add_u32 s{sAK}, s{sAK}, 4096")
        return r
    seq = []
    def issue(lst, tag):
        for i in lst:
            if i.startswith("buffer_"): seq.append(tag)
        return lst
    def vmwait(*tags):
        idx = [i for i, t in enumerate(seq) if t in tags]
        if not idx: return None
        n = len(seq) - 1 - max(idx)
        assert n <= 63
        return n
    def pro_issue(t):
        if t < NST and t < KT: a.many(issue(dma(t), f"d{t}"))
        if amode == 'frag' and t < PF and t < KT: a.many(issue(aload(t), f"a{t}"))
    pro_issue(0)
    if OPT.get('pro_all'):
        for t in range(1, max(NST, PF)): pro_issue(t)
    e("v_and_b32 v3, 31, v2")
    e("v_lshrrev_b32 v4, 5, v2")
    if amode == 'lds':
        e("v_bfe_u32 v5, v3, 1, 3")
        e(f"s_mul_i32 s{sT}, s{sWM}, {MB*32*128}")
        for ks in range(4):
            e(f"v_add_u32 v6, {2*ks}, v4")
            e("v_xor_b32 v6, v6, v5")
            e("v_lshlrev_b32 v6, 4, v6")
            e("v_lshl_add_u32 v6, v3, 7, v6")
            e(f"v_add_u32 v{AAD+ks}, s{sT}, v6")
    e("v_bfe_u32 v5, v2, 2, 2")
    e("v_lshl_add_u32 v6, v4, 3, v5")
    e(f"v_mul_u32_u24 v6, {BROW}, v6")
    e("v_and_b32 v7, 3, v2")
    e("v_lshl_add_u32 v6, v7, 3, v6")
    e("v_bfe_u32 v7, v2, 4, 1")
    e("v_lshl_add_u32 v6, v7, 5, v6")
    if ABYTES: e(f"v_add_u32 v6, {NST*ABYTES}, v6")
    if Nt == 64: e("v_lshrrev_b32 v5, 1, v5")
    e(f"s_mul_i32 s{sT}, s{sWN}, {NBk}")
    for nb in range(NBk):
        e(f"s_add_u32 s{sC0}, s{sT}, {nb}")
        e(f"v_xor_b32 v7, s{sC0}, v5")
        e(f"v_lshl_add_u32 v{BAD+nb}, v7, 6, v6")
    sNW = 39
    e(f"s_mul_i32 s{sT}, s{sWN}, {NBk*32}")
    e(f"s_add_u32 s{sNW}, s{sN}, s{sT}")
    e(f"v_lshlrev_b32 v{VA}, 4, v2")
    def blk_off(ks_total, mb, nb, shift_n, mul2, dst):
        e(f"s_add_u32 s{dst}, s{sMB0}, {mb}")
        e(f"s_mul_i32 s{dst}, s{dst}, {ks_total}")
        e(f"s_lshr_b32 s{sC0}, s{sNW}, {shift_n}")
        e(f"s_add_u32 s{dst}, s{dst}, s{sC0}")
        e(f"s_add_u32 s{dst}, s{dst}, {mul2*nb}")
    if epi in ('final', 'sp'):
        e(f"s_lshl_b32 s{sT}, s{sMB0}, 5")
        e(f"v_add_u32 v5, s{sT}, v3")
    auxl = []
    if epi == 'final':
        e(f"s_mov_b32 s{sC0}, {ldc*2}")
        e(f"v_mul_lo_u32 v{VC}, v5, s{sC0}")
        e(f"v_lshl_add_u32 v{VC}, v4, 4, v{VC}")
        e(f"s_lshl_b32 s{sC0}, s{sNW}, 1")
        e(f"v_add_u32 v{VC}, s{sC0}, v{VC}")
    if epi == 'sp':
        e(f"v_lshlrev_b32 v{VX}, 1, v5")
    sv = len(a.lines)
    if epi == 'final':
        for mb in range(MB):
            for nb in range(NBk):
                blk_off(20, mb, nb, 5, 1, sT)
                e(f"s_lshl_b32 s{sT}, s{sT}, 11")
                for sp in range(nsplit):
                    if sp: e(f"s_add_u32 s{sT}, s{sT}, {2048*640*2}")
                    a.many([f"buffer_load_dwordx4 {vr(auxp(mb,nb,sp)+4*gq,4)}, v{VA}, {sr(sX1,4)}, s{sT} offen offset:{gq*1024}" for gq in range(2)])
                e(f"s_mov_b32 s{sT}, {mb*32*ldc*2}")
                a.many([f"buffer_load_dwordx4 {vr(auxx(mb,nb)+4*gp,4)}, v{VC}, {sr(sX2,4)}, s{sT} offen offset:{nb*64+gp*32}" for gp in range(2)])
    if epi == 'sp':
        for mb in range(MB):
            a.many([f"buffer_load_ushort v{auxb(mb)}, v{VX}, {sr(sX2,4)}, 0 offen offset:{mb*64}"])
            for nb in range(NBk):
                blk_off(108, mb, nb, 4, 2, sT)
                e(f"s_lshl_b32 s{sT}, s{sT}, 10")
                a.many([f"buffer_load_dwordx4 {vr(auxz(mb,nb)+4*gp,4)}, v{VA}, {sr(sX1,4)}, s{sT} offen offset:{gp*1024}" for gp in range(2)])
    auxl = [l.strip() for l in a.lines[sv:]]
    del a.lines[sv:]
    aux_spread = KT <= 16
    if not aux_spread:
        a.many(issue(auxl, "aux")); auxl = []
    auxg = []
    cur = []
    for ins in auxl:
        cur.append(ins)
        if ins.startswith("buffer_"): auxg.append(cur); cur = []
    if not OPT.get('pro_all'): pro_issue(1)
    for r in range(MB * NBk * 16): e(f"v_mov_b32 v{ACC+r}, 0")
    if not OPT.get('pro_all'):
        for t in range(2, max(NST, PF)): pro_issue(t)
    def reads(buf, stage, ks):
        r = []
        if amode == 'lds':
            for mb in range(MB):
                r.append(f"ds_read_b128 {vr(fa(buf,mb),4)}, v{AAD+ks} offset:{stage*ABYTES + mb*4096}")
        for nb in range(NBk):
            off = stage * BBYTES + ks * 16 * BROW
            r.append(f"ds_read_b64_tr_b16 {vr(fb(buf,nb),2)}, v{BAD+nb} offset:{off}")
            r.append(f"ds_read_b64_tr_b16 {vr(fb(buf,nb)+2,2)}, v{BAD+nb} offset:{off+4*BROW}")
        return r
    e(f"s_waitcnt vmcnt({vmwait('a0','d0')})")
    e("s_barrier")
    stamp(a, 1)
    a.many(reads(0, 0, 0))
    vq = []
    def enqueue(lst, tag):
        cur = []
        for ins in lst:
            if ins == "s_nop 0": continue
            cur.append(ins)
            if ins.startswith("buffer_"):
                vq.append((cur, tag)); cur = []
        if cur: vq[-1][0].extend(cur)
    def tile_code(kt):
        stage = kt % NST
        is_last = kt == KT - 1
        nks = last_nks if is_last else 4
        if amode == 'frag' and kt + PF < KT: enqueue(aload(kt + PF), f"a{kt+PF}")
        if auxg and kt >= 2:
            nleft = max(1, KT - 2 - kt)
            for _ in range(-(-len(auxg) // nleft)): vq.append((auxg.pop(0), "aux"))
        for ks in range(nks):
            buf = ks & 1
            mf = []
            for mb in range(MB):
                for nb in range(NBk):
                    bop = vr(fa(buf, mb), 4) if amode == 'lds' else ar(xf(kt, mb, ks), 4)
                    mf.append(f"v_mfma_f32_32x32x16_bf16 {vr(acc(mb,nb),16)}, {vr(fb(buf,nb),4)}, {bop}, {vr(acc(mb,nb),16)}")
            pre = ["s_waitcnt lgkmcnt(0)"]
            rd = []
            if ks < nks - 1:
                rd = reads(1 - buf, stage, ks + 1)
                phases_left = 3 - ks
            elif not is_last:
                assert not vq
                pre = [f"s_waitcnt vmcnt({vmwait(f'a{kt+1}', f'd{kt+1}')}) lgkmcnt(0)", "s_barrier"]
                rd = reads(0, (kt + 1) % NST, 0)
                if kt + NST < KT: enqueue(dma(stage), f"d{kt+NST}")
                phases_left = 4
            else:
                phases_left = 1
            ng = len(mf)
            take = -(-len(vq) // phases_left) if vq else 0
            take = min(take, len(vq))
            grp = [vq.pop(0) for _ in range(take)]
            gaps = [[] for _ in range(ng)]
            per_gap = max(2, -(-len(rd) // max(1, ng // 2)))
            for i, r in enumerate(rd): gaps[min(i // per_gap, ng - 1)].append(r)
            load = [len(g_) for g_ in gaps]
            pos = []
            for _ in range(take):
                gi_ = min(range(ng), key=lambda q: (load[q], -q))
                load[gi_] += 4
                pos.append(gi_)
            pos.sort()
            a.many(pre)
            gi_groups = {}
            for p_, gr in zip(pos, grp): gi_groups.setdefault(min(p_, ng - 1), []).append(gr)
            for gi in range(ng):
                e(mf[gi]); a.many(gaps[gi])
                for (ins_list, tag) in gi_groups.get(gi, []):
                    for k_, ins in enumerate(ins_list):
                        if ins.startswith("buffer_"):
                            seq.append(tag)
                            if k_ > 0 and "m0" in ins_list[k_-1] and ins.endswith("lds"): e("s_nop 0")
                        e(ins)
    per = NST if amode == 'lds' else (NST * NPF // math.gcd(NST, NPF))
    lookahead = max(NST, PF)
    G_ = (KT - lookahead) // per if KT > 16 else 0
    if G_ >= 2:
        marks = len(a.lines)
        e(f"s_mov_b32 s{sIT}, 0")
        a.raw(".p2align 6")
        a.label(f"{name}_loop")
        l0 = len(a.lines)
        for kt in range(per): tile_code(kt)
        body1 = a.lines[l0:]
        sv = len(a.lines)
        for kt in range(per, 2 * per): tile_code(kt)
        body2 = a.lines[sv:]
        del a.lines[sv:]
        if body1 != body2:
            del a.lines[marks:]
            for l in body1: a.lines.append(l)
            e(f"s_mov_b32 s{sIT}, 1")
            a.raw(".p2align 6")
            a.label(f"{name}_loop")
            for l in body2: a.lines.append(l)
            sv2 = len(a.lines)
            for kt in range(2 * per, 3 * per): tile_code(kt)
            assert a.lines[sv2:] == body2, "not steady"
            del a.lines[sv2:]
            done = 3
        else:
            done = 2
        e(f"s_add_u32 s{sIT}, s{sIT}, 1")
        e(f"s_cmp_lt_u32 s{sIT}, {G_}")
        e(f"s_cbranch_scc1 {name}_loop")
        sv = len(a.lines)
        for kt in range(done * per, G_ * per): tile_code(kt)
        del a.lines[sv:]
        start = G_ * per
        assert G_ >= done
    else:
        start = 0
    for kt in range(start, KT): tile_code(kt)
    stamp(a, 2)
    e("s_nop 15")
    e(f"s_mov_b32 s{sBK}, 0xffff0000")
    kind = epi
    def rnd(dst0, dst1, a0, a1, tmp):
        return [f"v_cvt_pk_bf16_f32 v{tmp}, v{a0}, v{a1}", f"v_lshlrev_b32 v{dst0}, 16, v{tmp}", f"v_and_b32 v{dst1}, s{sBK}, v{tmp}"]
    if kind == 'gelu':
        e(f"s_mov_b32 s{sC2}, {f32hex(0.044715)}")
        e(f"s_mov_b32 s{sAK}, {f32hex(-2.0 * math.sqrt(2.0 / math.pi) * LOG2E)}")
    if kind == 'final':
        e(f"s_mov_b32 s{sC2}, {f32hex(-LOG2E)}")
    if kind in ('sp', 'final'):
        e("s_waitcnt vmcnt(0)")
    if epi != 'final':
        e("s_lshr_b32 s46, s2, 3")
        e(f"s_mul_i32 s46, s46, {NW}")
        e(f"s_add_u32 s46, s46, s{sW}")
        code_prefetch(a, 48, 1, 40, 46)
    for mb in range(MB):
        if kind == 'sp': e(f"v_lshlrev_b32 v7, 16, v{auxb(mb)}")
        for nb in range(NBk):
            skip = None
            if N % Nt:
                skip = a.newlabel(name + "_skip")
                e(f"s_add_u32 s{sT}, s{sNW}, {nb*32}")
                e(f"s_cmp_ge_u32 s{sT}, {N}")
                e(f"s_cbranch_scc1 {skip}")
            A0 = acc(mb, nb)
            if kind == 'part':
                blk_off(20, mb, nb, 5, 1, sT)
                e(f"s_lshl_b32 s{sT}, s{sT}, 11")
                e(f"s_add_u32 s{sT}, s{sT}, s{sC1}")
                for p_ in range(8): e(f"v_cvt_pk_bf16_f32 v{A0+p_}, v{A0+2*p_}, v{A0+2*p_+1}")
                for gq in range(2):
                    e(f"buffer_store_dwordx4 {vr(A0+4*gq,4)}, v{VA}, {sr(sC,4)}, s{sT} offen offset:{gq*1024}")
                if skip: a.label(skip)
                continue
            for pp in range(4):
                prs = [(A0 + 4 * pp, T0), (A0 + 4 * pp + 2, T0 + 4)]
                xs = [(A0 + 4 * pp + i, T0 + 8 + i) for i in range(4)]
                if kind in ('gelu', 'sp', 'final'):
                    for (a0, tt) in prs: a.many(rnd(a0, a0 + 1, a0, a0 + 1, tt))
                if kind == 'gelu':
                    for (x, t) in xs: e(f"v_mul_f32 v{t}, v{x}, v{x}")
                    for (x, t) in xs: e(f"v_fma_f32 v{t}, v{t}, s{sC2}, 1.0")
                    for (x, t) in xs: e(f"v_mul_f32 v{t}, v{t}, v{x}")
                    for (x, t) in xs: e(f"v_mul_f32 v{t}, s{sAK}, v{t}")
                    for (x, t) in xs: e(f"v_exp_f32 v{t}, v{t}")
                    for (x, t) in xs: e(f"v_add_f32 v{t}, 1.0, v{t}")
                    for (x, t) in xs: e(f"v_rcp_f32 v{t}, v{t}")
                    for (x, t) in xs: e(f"v_mul_f32 v{x}, v{x}, v{t}")
                elif kind == 'sp':
                    for (x, t) in xs: e(f"v_add_f32 v{x}, v{x}, v7")
                elif kind == 'final':
                    for (x, t) in xs: e(f"v_mul_f32 v{t}, s{sC2}, v{x}")
                    for (x, t) in xs: e(f"v_exp_f32 v{t}, v{t}")
                    P0 = T0 + 12
                    for sp in range(nsplit):
                        for h in range(2):
                            src = auxp(mb, nb, sp) + 2 * pp + h
                            if sp == 0:
                                e(f"v_lshlrev_b32 v{P0+2*h}, 16, v{src}"); e(f"v_and_b32 v{P0+2*h+1}, s{sBK}, v{src}")
                            else:
                                e(f"v_lshlrev_b32 v{T0+16+2*h}, 16, v{src}"); e(f"v_and_b32 v{T0+17+2*h}, s{sBK}, v{src}")
                        if sp:
                            for i in range(4): e(f"v_add_f32 v{P0+i}, v{P0+i}, v{T0+16+i}")
                    for (x, t) in xs: e(f"v_add_f32 v{t}, 1.0, v{t}")
                    for (x, t) in xs: e(f"v_rcp_f32 v{t}, v{t}")
                    for h in range(2): a.many(rnd(P0 + 2 * h, P0 + 2 * h + 1, P0 + 2 * h, P0 + 2 * h + 1, T0 + 4 * h))
                    for (x, t) in xs: e(f"v_mul_f32 v{x}, v{x}, v{t}")
                    for (a0, tt) in prs: a.many(rnd(a0, a0 + 1, a0, a0 + 1, tt))
                    for i, (x, t) in enumerate(xs): e(f"v_mul_f32 v{x}, v{x}, v{P0+i}")
                for h in range(2):
                    e(f"v_cvt_pk_bf16_f32 v{A0+2*pp+h}, v{A0+4*pp+2*h}, v{A0+4*pp+2*h+1}")
            e("s_nop 1")
            for gp in range(2):
                t = A0 + 4 * gp
                e(f"v_permlane32_swap_b32 v{t}, v{t+2}")
                e(f"v_permlane32_swap_b32 v{t+1}, v{t+3}")
            e("s_nop 1")
            if kind in ('sp', 'final'):
                XB = auxz(mb, nb) if kind == 'sp' else auxx(mb, nb)
                op = "v_mul_f32" if kind == 'sp' else "v_add_f32"
                for p2 in range(4):
                    for h in range(2):
                        d = A0 + 2 * p2 + h; tt = T0 + 4 * h
                        e(f"v_lshlrev_b32 v{tt}, 16, v{d}"); e(f"v_and_b32 v{tt+1}, s{sBK}, v{d}")
                        e(f"v_lshlrev_b32 v{tt+2}, 16, v{XB+2*p2+h}"); e(f"v_and_b32 v{tt+3}, s{sBK}, v{XB+2*p2+h}")
                    for h in range(2):
                        tt = T0 + 4 * h
                        e(f"{op} v{tt}, v{tt}, v{tt+2}"); e(f"{op} v{tt+1}, v{tt+1}, v{tt+3}")
                    for h in range(2):
                        e(f"v_cvt_pk_bf16_f32 v{A0+2*p2+h}, v{T0+4*h}, v{T0+4*h+1}")
            if kind == 'final':
                e(f"s_mov_b32 s{sT}, {mb*32*ldc*2}")
                for gp in range(2):
                    e(f"buffer_store_dwordx4 {vr(A0+4*gp,4)}, v{VC}, {sr(sC,4)}, s{sT} offen offset:{nb*64+gp*32}")
            else:
                blk_off(108 if kind == 'gelu' else 54, mb, nb, 4, 2, sT)
                e(f"s_lshl_b32 s{sT}, s{sT}, 10")
                for gp in range(2):
                    e(f"buffer_store_dwordx4 {vr(A0+4*gp,4)}, v{VA}, {sr(sC,4)}, s{sT} offen offset:{gp*1024}")
            if skip: a.label(skip)
    stamp(a, 3)
    stamp_out(a, name)
    return NV, NA, lds

def load_srds(a, specs):
    for (d, (kind, val), nb) in specs:
        a.e(f"s_load_dwordx2 s[{d}:{d+1}], s[0:1], {val*8 if kind == 'in' else 96}")
    a.e("v_lshrrev_b32 v1, 6, v0")
    a.e("v_and_b32 v2, 63, v0")
    a.e("s_nop 0")
    a.e(f"v_readfirstlane_b32 s{G.sW}, v1")
    a.e("s_waitcnt lgkmcnt(0)")
    for (d, (kind, val), nb) in specs:
        if kind == 'ws' and val:
            a.e(f"s_add_u32 s{d}, s{d}, {val}")
            a.e(f"s_addc_u32 s{d+1}, s{d+1}, 0")
        a.e(f"s_mov_b32 s{d+2}, {nb}")
        a.e(f"s_mov_b32 s{d+3}, 0x20000")

XNB = 2048 * 640 * 2; ZB = 2048 * 1728 * 2; Z2B = 2048 * 864 * 2

def simple_tile_ids(a, MT, Mt, Nt):
    MPX = MT // 8
    lg = MPX.bit_length() - 1
    e = a.e
    e(f"s_and_b32 s{G.sM}, s2, 7")
    e(f"s_lshl_b32 s{G.sM}, s{G.sM}, {lg}")
    e(f"s_lshr_b32 s{G.sT}, s2, 3")
    e(f"s_and_b32 s{G.sN}, s{G.sT}, {MPX-1}")
    e(f"s_add_u32 s{G.sM}, s{G.sM}, s{G.sN}")
    e(f"s_lshr_b32 s{G.sN}, s{G.sT}, {lg}")
    e(f"s_mul_i32 s{G.sM}, s{G.sM}, {Mt}")
    e(f"s_mul_i32 s{G.sN}, s{G.sN}, {Nt}")
    e(f"s_mov_b32 s{G.sK0}, 0")

def gen_win(a, Mt=128, Nt=128, WM=4, WN=2, NST=4, PF=3):
    name = "win_kernel"
    MT = 2048 // Mt; NT = (1728 + Nt - 1) // Nt
    kernel_header(a, name)
    a.e(f"s_cmp_ge_u32 s2, {MT*NT}"); a.e(f"s_cbranch_scc1 {name}_done")
    load_srds(a, [(G.sA, ('ws', WS_XN), XNB), (G.sB, ('in', 6), 640*1728*2), (G.sC, ('ws', WS_Z), ZB)])
    simple_tile_ids(a, MT, Mt, Nt)
    NV, NA, lds = gemm_body(a, name, 1728, 640, 10, 4, None, 1728, 'gelu', Mt, Nt, WM, WN, NST, 'frag', PF=PF, ksteps_A=40)
    a.label(f"{name}_done"); a.e("s_endpgm")
    return name, kernel_desc(name, NV, NA, 90), (MT * NT, WM * WN * 64, lds)

def gen_fin(a, Mt=128, Nt=64, WM=4, WN=1, NST=6, PF=4, nsplit=3):
    name = "fin_kernel"
    MT = 2048 // Mt; NT = 640 // Nt
    kernel_header(a, name)
    a.e(f"s_cmp_ge_u32 s2, {MT*NT}"); a.e(f"s_cbranch_scc1 {name}_done")
    load_srds(a, [(G.sA, ('ws', WS_T), Z2B), (G.sB, ('in', 9), 864*640*2), (G.sC, ('in', 10), XNB),
                  (G.sX1, ('ws', WS_S), nsplit * 2048 * 640 * 2), (G.sX2, ('in', 0), XNB)])
    simple_tile_ids(a, MT, Mt, Nt)
    NV, NA, lds = gemm_body(a, name, 640, 864, 14, 2, None, 640, 'final', Mt, Nt, WM, WN, NST, 'frag', PF=PF, ksteps_A=54, ldc=640, nsplit=nsplit)
    a.label(f"{name}_done"); a.e("s_endpgm")
    return name, kernel_desc(name, NV, NA, 90), (MT * NT, WM * WN * 64, lds)

def gen_spwo(a, NST_SP=4, NST_WO=4, PF=3):
    name = "spwo_kernel"
    e = a.e
    kernel_header(a, name)
    e("s_cmp_ge_u32 s2, 248"); e(f"s_cbranch_scc1 {name}_done")
    e("s_lshr_b32 s40, s2, 3")
    e("s_and_b32 s41, s2, 7")
    e("s_cmp_lt_u32 s40, 15"); e(f"s_cbranch_scc1 {name}_wo")
    e("s_sub_u32 s40, s40, 15")
    e("s_and_b32 s42, s41, 1")
    e("s_lshl_b32 s43, s42, 2")
    e("s_sub_u32 s44, 16, s43")
    e("s_cmp_ge_u32 s40, s44"); e(f"s_cbranch_scc1 {name}_done")
    load_srds(a, [(G.sA, ('in', 7), 2048*2048*2), (G.sB, ('ws', WS_Z2N), Z2B), (G.sC, ('ws', WS_T), Z2B),
                  (G.sX1, ('ws', WS_Z), ZB), (G.sX2, ('in', 8), 4096)])
    e(f"s_lshr_b32 s{G.sM}, s41, 1")
    e(f"s_lshl_b32 s{G.sM}, s{G.sM}, 2")
    e(f"s_and_b32 s{G.sT}, s40, 3")
    e(f"s_add_u32 s{G.sM}, s{G.sM}, s{G.sT}")
    e(f"s_lshl_b32 s{G.sM}, s{G.sM}, 7")
    e(f"s_lshr_b32 s{G.sN}, s40, 2")
    e(f"s_add_u32 s{G.sN}, s{G.sN}, s43")
    e(f"s_lshl_b32 s{G.sN}, s{G.sN}, 7")
    e(f"s_mov_b32 s{G.sK0}, 0")
    NV1, NA1, lds1 = gemm_body(a, name + "_sp", 864, 2048, 32, 4, 2048, 864, 'sp', 128, 128, 2, 2, NST_SP, 'lds')
    e("s_endpgm")
    a.label(f"{name}_wo")
    load_srds(a, [(G.sA, ('ws', WS_O), 16 << 20), (G.sB, ('in', 4), 4096*640*2), (G.sC, ('ws', WS_S), 3 * 2048 * 640 * 2)])
    e("s_mul_i32 s42, s40, 13")
    e("s_lshr_b32 s42, s42, 6")
    e("s_mul_i32 s43, s42, 5")
    e("s_sub_u32 s43, s40, s43")
    e("s_mul_i32 s45, s41, 3")
    e("s_add_u32 s45, s45, s42")
    e("s_lshr_b32 s42, s45, 3")
    e("s_and_b32 s45, s45, 7")
    e(f"s_lshl_b32 s{G.sM}, s45, 8")
    e(f"s_lshl_b32 s{G.sN}, s43, 7")
    e(f"s_mul_i32 s{G.sK0}, s42, 22")
    e(f"s_mul_i32 s44, s42, {2048*640*2}")
    mark = len(a.lines)
    NV2, NA2, lds2 = gemm_body(a, name + "_wo", 640, 4096, 22, 4, None, 640, 'part', 256, 128, 4, 1, NST_WO, 'frag', PF=PF, ksteps_A=256)
    for i in range(len(a.lines) - 1, mark, -1):
        if a.lines[i].strip() == "s_nop 15":
            a.lines.insert(i + 1, f"    s_mov_b32 s{G.sC1}, s44")
            break
    a.label(f"{name}_done"); e("s_endpgm")
    return name, kernel_desc(name, max(NV1, NV2), max(NA1, NA2), 90), (248, 256, max(lds1, lds2))
```

```python
from asmlib import *
from gemm import f32hex

def ln_math(a, D, F, X, NI, rbits, ncols, smask, sAND, sC1, sC2):
    e = a.e
    def fl(i, k): return F + i * 8 + k
    if smask:
        for k in range(4): e(f"v_cndmask_b32 v{D+(NI-1)*4+k}, 0, v{D+(NI-1)*4+k}, {smask}")
    for i in range(NI):
        for k in range(4):
            e(f"v_lshlrev_b32 v{fl(i,2*k)}, 16, v{D+i*4+k}")
            e(f"v_and_b32 v{fl(i,2*k+1)}, s{sAND}, v{D+i*4+k}")
    def reduce(rg):
        for b in range(rbits, 5):
            off = ((1 << b) << 10) | 0x1F
            e(f"ds_swizzle_b32 v{X+4}, v{rg} offset:{hex(off)}")
            e("s_waitcnt lgkmcnt(0)")
            e(f"v_add_f32 v{rg}, v{rg}, v{X+4}")
        e(f"v_mov_b32 v{X+4}, v{rg}")
        e("s_nop 1")
        e(f"v_permlane32_swap_b32 v{X+4}, v{rg}")
        e("s_nop 1")
        e(f"v_add_f32 v{rg}, v{rg}, v{X+4}")
    allf = [fl(i, k) for i in range(NI) for k in range(8)]
    e(f"v_add_f32 v{X}, v{allf[0]}, v{allf[1]}")
    e(f"v_add_f32 v{X+1}, v{allf[2]}, v{allf[3]}")
    for n, r in enumerate(allf[4:]): e(f"v_add_f32 v{X+(n&1)}, v{X+(n&1)}, v{r}")
    e(f"v_add_f32 v{X}, v{X}, v{X+1}")
    reduce(X)
    e(f"s_mov_b32 s{sC1}, {f32hex(1.0/ncols)}")
    e(f"v_mul_f32 v{X}, s{sC1}, v{X}")
    e(f"v_mov_b32 v{X+1}, 0"); e(f"v_mov_b32 v{X+2}, 0")
    for n, r in enumerate(allf):
        t = X + 5 + (n & 1)
        e(f"v_sub_f32 v{t}, v{r}, v{X}")
        if smask and n >= (NI - 1) * 8: e(f"v_cndmask_b32 v{t}, 0, v{t}, {smask}")
        e(f"v_fmac_f32 v{X+1+(n&1)}, v{t}, v{t}")
    e(f"v_add_f32 v{X+1}, v{X+1}, v{X+2}")
    reduce(X + 1)
    m = X; v = X + 1; t = X + 4
    e(f"s_mov_b32 s{sC2}, {f32hex(1e-5)}")
    e(f"v_mul_f32 v{v}, s{sC1}, v{v}")
    e(f"v_cvt_pk_bf16_f32 v{t}, v{m}, v{v}")
    e(f"v_lshlrev_b32 v{m}, 16, v{t}")
    e(f"v_and_b32 v{v}, s{sAND}, v{t}")
    e(f"v_add_f32 v{v}, s{sC2}, v{v}")
    e(f"v_cvt_pk_bf16_f32 v{t}, v{v}, v{v}")
    e(f"v_and_b32 v{v}, s{sAND}, v{t}")
    e(f"v_sqrt_f32 v{v}, v{v}")
    e("s_nop 0")
    e(f"v_cvt_pk_bf16_f32 v{t}, v{v}, v{v}")
    e(f"v_and_b32 v{v}, s{sAND}, v{t}")
    e(f"v_rcp_f32 v{v}, v{v}")
    e("s_nop 0")
    for i in range(NI):
        for k in range(4):
            a0 = fl(i, 2 * k); a1 = a0 + 1; tt = X + 5 + (k & 1)
            e(f"v_sub_f32 v{a0}, v{a0}, v{m}"); e(f"v_sub_f32 v{a1}, v{a1}, v{m}")
            e(f"v_cvt_pk_bf16_f32 v{tt}, v{a0}, v{a1}")
            e(f"v_lshlrev_b32 v{a0}, 16, v{tt}"); e(f"v_and_b32 v{a1}, s{sAND}, v{tt}")
            e(f"v_mul_f32 v{a0}, v{a0}, v{v}"); e(f"v_mul_f32 v{a1}, v{a1}, v{v}")
            e(f"v_cvt_pk_bf16_f32 v{D+i*4+k}, v{a0}, v{a1}")

def gen_ln1(a):
    name = "ln1_kernel"
    e = a.e
    kernel_header(a, name)
    e("s_cmp_ge_u32 s2, 256"); e(f"s_cbranch_scc1 {name}_done")
    e("s_load_dwordx2 s[4:5], s[0:1], 0")
    e("s_load_dwordx2 s[8:9], s[0:1], 96")
    e("v_lshrrev_b32 v1, 6, v0")
    e("v_and_b32 v2, 63, v0")
    e("s_nop 0")
    e("v_readfirstlane_b32 s20, v1")
    e("s_lshl_b32 s21, s2, 3")
    e("s_lshl_b32 s22, s20, 2")
    e("s_add_u32 s21, s21, s22")
    e("v_and_b32 v3, 3, v2")
    e("v_lshrrev_b32 v4, 2, v2")
    e("v_add_u32 v5, s21, v3")
    e("s_mov_b32 s22, 1280")
    e("v_mul_lo_u32 v6, v5, s22")
    e("v_lshl_add_u32 v6, v4, 4, v6")
    e("s_waitcnt lgkmcnt(0)")
    e(f"s_mov_b32 s6, {2048*640*2}"); e("s_mov_b32 s7, 0x20000")
    if WS_XN:
        e(f"s_add_u32 s8, s8, {WS_XN}"); e("s_addc_u32 s9, s9, 0")
    e(f"s_mov_b32 s10, {2048*640*2}"); e("s_mov_b32 s11, 0x20000")
    D = 16; F = D + 20; X = F + 40
    for i in range(5): e(f"buffer_load_dwordx4 {vr(D+4*i,4)}, v6, s[4:7], 0 offen offset:{i*256}")
    e("s_load_dwordx2 s[12:13], s[0:1], 48")
    e("s_load_dwordx2 s[16:17], s[0:1], 24")
    e("s_lshl_b32 s22, s2, 1")
    e("s_add_u32 s22, s22, s20")
    e("s_lshl_b32 s22, s22, 10")
    e("v_lshl_add_u32 v9, v2, 4, s22")
    e("s_waitcnt lgkmcnt(0)")
    e(f"s_mov_b32 s14, {640*1728*2}"); e("s_mov_b32 s15, 0x20000")
    e(f"s_mov_b32 s18, {640*4096*2}"); e("s_mov_b32 s19, 0x20000")
    for i in range(5 if OPT['prefetch'] else 0):
        e(f"s_mov_b32 s22, {i*524288}")
        e(f"buffer_load_dwordx4 v[12:15], v9, s[12:15], s22 offen")
    for i in range(10 if (OPT['prefetch'] and not OPT.get('wq_in_win')) else 0):
        e(f"s_mov_b32 s22, {i*524288}")
        e(f"buffer_load_dwordx4 v[12:15], v9, s[16:19], s22 offen")
    e("s_lshr_b32 s23, s2, 3")
    e("s_lshl_b32 s23, s23, 1")
    e("s_add_u32 s23, s23, s20")
    ncp = 2 if code_prefetch(a, 28, 10, 12, 23, nloads=2, stride=65536) else 0
    e("v_lshrrev_b32 v7, 5, v5")
    e("s_mov_b32 s22, 40960")
    e("v_mul_lo_u32 v7, v7, s22")
    e("v_lshrrev_b32 v8, 1, v4")
    e("v_lshl_add_u32 v7, v8, 10, v7")
    e("v_and_b32 v8, 1, v4")
    e("v_lshl_add_u32 v7, v8, 9, v7")
    e("v_and_b32 v8, 31, v5")
    e("v_lshl_add_u32 v7, v8, 4, v7")
    e("s_mov_b32 s24, 0xffff0000")
    e(f"s_waitcnt vmcnt({((5 if OPT.get('wq_in_win') else 15) if OPT['prefetch'] else 0) + ncp})")
    ln_math(a, D, F, X, 5, 2, 640, None, 24, 25, 26)
    for i in range(5):
        e(f"s_mov_b32 s22, {i*8192}")
        e(f"buffer_store_dwordx4 {vr(D+4*i,4)}, v7, s[8:11], s22 offen")
    a.label(f"{name}_done")
    e("s_endpgm")
    return name, kernel_desc(name, X + 8, 0, 40), (256, 128, 0)
```

```python
from asmlib import *
from gemm import f32hex
import math

LOG2E = math.log2(math.e)
STAMP = {"on": False}
def stamp(a, k):
    if STAMP["on"]:
        a.e(f"s_memtime s[{60+2*k}:{61+2*k}]")
def stamp_out(a, name):
    if not STAMP["on"]: return
    e = a.e
    lbl = a.newlabel(name + "_nost")
    e("s_waitcnt vmcnt(0)")
    e("s_memtime s[68:69]")
    e("s_load_dwordx2 s[76:77], s[0:1], 88")
    e("s_waitcnt lgkmcnt(0)")
    e("s_mov_b32 s78, 256"); e("s_mov_b32 s79, 0x20000")
    e(f"s_cmp_lg_u32 s{G.sW}, 0"); e(f"s_cbranch_scc1 {lbl}")
    e("s_and_b32 s80, s2, 0x3f"); e("s_cmp_lg_u32 s80, 5"); e(f"s_cbranch_scc1 {lbl}")
    e("s_lshr_b32 s80, s2, 6"); e("s_lshl_b32 s80, s80, 6")
    for i in range(12): e(f"v_mov_b32 v{32+i}, s{60+i}")
    e("v_mov_b32 v1, 0")
    e("v_cmp_eq_u32 vcc, 0, v2")
    e("s_and_saveexec_b64 s[82:83], vcc")
    for i in range(3): e(f"buffer_store_dwordx4 v[{32+4*i}:{35+4*i}], v1, s[76:79], s80 offen offset:{16*i}")
    e("s_waitcnt vmcnt(0)")
    a.label(lbl)

class G:
    sA, sB, sC, sX1, sX2 = 4, 8, 12, 16, 20
    sW, sM0, sAK, sBK, sIT, sM, sN, sT, sWM, sWN, sC0, sC1, sC2, sK0, sMB0 = 24, 25, 26, 27, 28, 29, 30, 31, 32, 33, 34, 35, 36, 37, 38

def gemm_body(a, name, N, Kfull, KT, last_nks, lda, ldb, epi, Mt, Nt, WM, WN, NST, amode, PF=3, ksteps_A=None, ldc=None, ldx=None, nsplit=1):
    g = G
    NW = WM * WN
    MB = Mt // WM // 32
    NBk = Nt // WN // 32
    ABYTES = Mt * 128 if amode == 'lds' else 0
    BBYTES = 64 * Nt * 2
    PA = Mt // 8 // NW if amode == 'lds' else 0
    PB = BBYTES // 1024 // NW
    assert PA <= 4 and 1 <= PB <= 4
    AFL = MB * 4 if amode == 'frag' else 0
    BROW = Nt * 2
    assert Nt in (64, 128)
    RPP = 1024 // BROW
    lds = (ABYTES + BBYTES) * NST
    assert NST * ABYTES <= 65536 and NST * BBYTES <= 65536
    AAD = 8; BAD = 12; ADM = 16; BDM = 20; VC = 24; VX = 25; VA = 26; T0 = 28
    ACC = 48
    def acc(mb, nb): return ACC + (mb * NBk + nb) * 16
    FR = ACC + MB * NBk * 16
    FA = MB if amode == 'lds' else 0
    def fa(buf, mb): return FR + buf * (FA + NBk) * 4 + mb * 4
    def fb(buf, nb): return FR + buf * (FA + NBk) * 4 + FA * 4 + nb * 4
    NV = FR + 2 * (FA + NBk) * 4
    AUX = NV
    if epi == 'sp': NV += MB * NBk * 8 + MB
    if epi == 'final': NV += MB * NBk * (8 * nsplit + 8)
    def auxz(mb, nb): return AUX + (mb * NBk + nb) * 8
    def auxb(mb): return AUX + MB * NBk * 8 + mb
    def auxp(mb, nb, sp): return AUX + ((mb * NBk + nb) * nsplit + sp) * 8
    def auxx(mb, nb): return AUX + MB * NBk * nsplit * 8 + (mb * NBk + nb) * 8
    NPF = PF + 1
    def xf(t, mb, ks): return ((t % NPF) * MB + mb) * 16 + ks * 4
    NA = NPF * MB * 16 if amode == 'frag' else 0
    sA, sB, sC, sX1, sX2 = g.sA, g.sB, g.sC, g.sX1, g.sX2
    sW, sM0, sAK, sBK, sIT, sM, sN, sT, sWM, sWN, sC0, sC1, sC2, sK0, sMB0 = g.sW, g.sM0, g.sAK, g.sBK, g.sIT, g.sM, g.sN, g.sT, g.sWM, g.sWN, g.sC0, g.sC1, g.sC2, g.sK0, g.sMB0
    e = a.e
    stamp(a, 0)
    e(f"s_and_b32 s{sWN}, s{sW}, {WN-1}")
    e(f"s_lshr_b32 s{sWM}, s{sW}, {WN.bit_length()-1}")
    e(f"s_lshr_b32 s{sMB0}, s{sM}, 5")
    e(f"s_mul_i32 s{sT}, s{sWM}, {MB}")
    e(f"s_add_u32 s{sMB0}, s{sMB0}, s{sT}")
    if amode == 'lds':
        e("v_lshrrev_b32 v3, 3, v2")
        e("v_and_b32 v4, 7, v2")
        e(f"s_mul_i32 s{sT}, s{sW}, {8*PA}")
        e(f"v_add_u32 v3, s{sT}, v3")
        e(f"s_mov_b32 s{sC0}, {lda*2}")
        for i in range(PA):
            e(f"v_add_u32 v5, {8*i}, v3")
            e("v_bfe_u32 v6, v5, 1, 3")
            e("v_xor_b32 v6, v6, v4")
            e(f"v_add_u32 v5, s{sM}, v5")
            e(f"v_mul_lo_u32 v5, v5, s{sC0}")
            e("v_lshl_add_u32 v5, v6, 4, v5")
            if i: e(f"v_subrev_u32 v5, {1024*i}, v5")
            e(f"v_mov_b32 v{ADM+i}, v5")
        e(f"s_lshl_b32 s{sAK}, s{sK0}, 7")
    else:
        for mb in range(MB):
            e(f"v_lshlrev_b32 v{ADM+mb}, 4, v2")
            if mb: e(f"v_add_u32 v{ADM+mb}, {mb*ksteps_A*1024}, v{ADM+mb}")
        e(f"s_mul_i32 s{sAK}, s{sMB0}, {ksteps_A*1024}")
        e(f"s_lshl_b32 s{sT}, s{sK0}, 12")
        e(f"s_add_u32 s{sAK}, s{sAK}, s{sT}")
    CPR = 64 // RPP
    lgc = CPR.bit_length() - 1
    e(f"v_lshrrev_b32 v3, {lgc}, v2")
    e(f"v_and_b32 v4, {CPR-1}, v2")
    e(f"s_mul_i32 s{sT}, s{sW}, {RPP*PB}")
    e(f"v_add_u32 v3, s{sT}, v3")
    e(f"s_mov_b32 s{sC0}, {ldb*2}")
    e(f"s_lshl_b32 s{sC1}, s{sN}, 1")
    for i in range(PB):
        e(f"v_add_u32 v5, {RPP*i}, v3")
        if Nt == 128: e("v_and_b32 v6, 3, v5")
        else: e("v_bfe_u32 v6, v5, 1, 1")
        e("v_lshlrev_b32 v6, 2, v6")
        e("v_xor_b32 v6, v6, v4")
        e(f"v_mul_lo_u32 v5, v5, s{sC0}")
        e("v_lshl_add_u32 v5, v6, 4, v5")
        e(f"v_add_u32 v5, s{sC1}, v5")
        if i: e(f"v_subrev_u32 v5, {1024*i}, v5")
        e(f"v_mov_b32 v{BDM+i}, v5")
    e(f"s_mul_i32 s{sM0}, s{sW}, {PA*1024}")
    e(f"s_mul_i32 s{sC2}, s{sW}, {PB*1024}")
    e(f"s_mul_i32 s{sBK}, s{sK0}, {64*ldb*2}")
    def dma(stage):
        r = []
        if amode == 'lds':
            r += [f"s_add_u32 m0, s{sM0}, {stage*ABYTES}", "s_nop 0"]
            for i in range(PA):
                r.append(f"buffer_load_dwordx4 v{ADM+i}, {sr(sA,4)}, s{sAK} offen offset:{i*1024} lds")
            r.append(f"s_add_u32 m0, s{sC2}, {NST*ABYTES+stage*BBYTES}")
            r.append(f"s_add_u32 s{sAK}, s{sAK}, 128")
        else:
            r += [f"s_add_u32 m0, s{sC2}, {stage*BBYTES}", "s_nop 0"]
        for i in range(PB):
            r.append(f"buffer_load_dwordx4 v{BDM+i}, {sr(sB,4)}, s{sBK} offen offset:{i*1024} lds")
        r.append(f"s_add_u32 s{sBK}, s{sBK}, {64*ldb*2}")
        return r
    def aload(t):
        r = []
        for mb in range(MB):
            for ks in range(4):
                r.append(f"buffer_load_dwordx4 {ar(xf(t,mb,ks),4)}, v{ADM+mb}, {sr(sA,4)}, s{sAK} offen offset:{ks*1024}")
        r.append(f"s_add_u32 s{sAK}, s{sAK}, 4096")
        return r
    seq = []
    def issue(lst, tag):
        for i in lst:
            if i.startswith("buffer_"): seq.append(tag)
        return lst
    def vmwait(*tags):
        idx = [i for i, t in enumerate(seq) if t in tags]
        if not idx: return None
        n = len(seq) - 1 - max(idx)
        assert n <= 63
        return n
    def pro_issue(t):
        if t < NST and t < KT: a.many(issue(dma(t), f"d{t}"))
        if amode == 'frag' and t < PF and t < KT: a.many(issue(aload(t), f"a{t}"))
    pro_issue(0)
    if OPT.get('pro_all'):
        for t in range(1, max(NST, PF)): pro_issue(t)
    e("v_and_b32 v3, 31, v2")
    e("v_lshrrev_b32 v4, 5, v2")
    if amode == 'lds':
        e("v_bfe_u32 v5, v3, 1, 3")
        e(f"s_mul_i32 s{sT}, s{sWM}, {MB*32*128}")
        for ks in range(4):
            e(f"v_add_u32 v6, {2*ks}, v4")
            e("v_xor_b32 v6, v6, v5")
            e("v_lshlrev_b32 v6, 4, v6")
            e("v_lshl_add_u32 v6, v3, 7, v6")
            e(f"v_add_u32 v{AAD+ks}, s{sT}, v6")
    e("v_bfe_u32 v5, v2, 2, 2")
    e("v_lshl_add_u32 v6, v4, 3, v5")
    e(f"v_mul_u32_u24 v6, {BROW}, v6")
    e("v_and_b32 v7, 3, v2")
    e("v_lshl_add_u32 v6, v7, 3, v6")
    e("v_bfe_u32 v7, v2, 4, 1")
    e("v_lshl_add_u32 v6, v7, 5, v6")
    if ABYTES: e(f"v_add_u32 v6, {NST*ABYTES}, v6")
    if Nt == 64: e("v_lshrrev_b32 v5, 1, v5")
    e(f"s_mul_i32 s{sT}, s{sWN}, {NBk}")
    for nb in range(NBk):
        e(f"s_add_u32 s{sC0}, s{sT}, {nb}")
        e(f"v_xor_b32 v7, s{sC0}, v5")
        e(f"v_lshl_add_u32 v{BAD+nb}, v7, 6, v6")
    sNW = 39
    e(f"s_mul_i32 s{sT}, s{sWN}, {NBk*32}")
    e(f"s_add_u32 s{sNW}, s{sN}, s{sT}")
    e(f"v_lshlrev_b32 v{VA}, 4, v2")
    def blk_off(ks_total, mb, nb, shift_n, mul2, dst):
        e(f"s_add_u32 s{dst}, s{sMB0}, {mb}")
        e(f"s_mul_i32 s{dst}, s{dst}, {ks_total}")
        e(f"s_lshr_b32 s{sC0}, s{sNW}, {shift_n}")
        e(f"s_add_u32 s{dst}, s{dst}, s{sC0}")
        e(f"s_add_u32 s{dst}, s{dst}, {mul2*nb}")
    if epi in ('final', 'sp'):
        e(f"s_lshl_b32 s{sT}, s{sMB0}, 5")
        e(f"v_add_u32 v5, s{sT}, v3")
    auxl = []
    if epi == 'final':
        e(f"s_mov_b32 s{sC0}, {ldc*2}")
        e(f"v_mul_lo_u32 v{VC}, v5, s{sC0}")
        e(f"v_lshl_add_u32 v{VC}, v4, 4, v{VC}")
        e(f"s_lshl_b32 s{sC0}, s{sNW}, 1")
        e(f"v_add_u32 v{VC}, s{sC0}, v{VC}")
    if epi == 'sp':
        e(f"v_lshlrev_b32 v{VX}, 1, v5")
    sv = len(a.lines)
    if epi == 'final':
        for mb in range(MB):
            for nb in range(NBk):
                blk_off(20, mb, nb, 5, 1, sT)
                e(f"s_lshl_b32 s{sT}, s{sT}, 11")
                for sp in range(nsplit):
                    if sp: e(f"s_add_u32 s{sT}, s{sT}, {2048*640*2}")
                    a.many([f"buffer_load_dwordx4 {vr(auxp(mb,nb,sp)+4*gq,4)}, v{VA}, {sr(sX1,4)}, s{sT} offen offset:{gq*1024}" for gq in range(2)])
                e(f"s_mov_b32 s{sT}, {mb*32*ldc*2}")
                a.many([f"buffer_load_dwordx4 {vr(auxx(mb,nb)+4*gp,4)}, v{VC}, {sr(sX2,4)}, s{sT} offen offset:{nb*64+gp*32}" for gp in range(2)])
    if epi == 'sp':
        for mb in range(MB):
            a.many([f"buffer_load_ushort v{auxb(mb)}, v{VX}, {sr(sX2,4)}, 0 offen offset:{mb*64}"])
            for nb in range(NBk):
                blk_off(108, mb, nb, 4, 2, sT)
                e(f"s_lshl_b32 s{sT}, s{sT}, 10")
                a.many([f"buffer_load_dwordx4 {vr(auxz(mb,nb)+4*gp,4)}, v{VA}, {sr(sX1,4)}, s{sT} offen offset:{gp*1024}" for gp in range(2)])
    auxl = [l.strip() for l in a.lines[sv:]]
    del a.lines[sv:]
    aux_spread = KT <= 16
    if not aux_spread:
        a.many(issue(auxl, "aux")); auxl = []
    auxg = []
    cur = []
    for ins in auxl:
        cur.append(ins)
        if ins.startswith("buffer_"): auxg.append(cur); cur = []
    if not OPT.get('pro_all'): pro_issue(1)
    for r in range(MB * NBk * 16): e(f"v_mov_b32 v{ACC+r}, 0")
    if not OPT.get('pro_all'):
        for t in range(2, max(NST, PF)): pro_issue(t)
    def reads(buf, stage, ks):
        r = []
        if amode == 'lds':
            for mb in range(MB):
                r.append(f"ds_read_b128 {vr(fa(buf,mb),4)}, v{AAD+ks} offset:{stage*ABYTES + mb*4096}")
        for nb in range(NBk):
            off = stage * BBYTES + ks * 16 * BROW
            r.append(f"ds_read_b64_tr_b16 {vr(fb(buf,nb),2)}, v{BAD+nb} offset:{off}")
            r.append(f"ds_read_b64_tr_b16 {vr(fb(buf,nb)+2,2)}, v{BAD+nb} offset:{off+4*BROW}")
        return r
    e(f"s_waitcnt vmcnt({vmwait('a0','d0')})")
    e("s_barrier")
    stamp(a, 1)
    a.many(reads(0, 0, 0))
    vq = []
    def enqueue(lst, tag):
        cur = []
        for ins in lst:
            if ins == "s_nop 0": continue
            cur.append(ins)
            if ins.startswith("buffer_"):
                vq.append((cur, tag)); cur = []
        if cur: vq[-1][0].extend(cur)
    def tile_code(kt):
        stage = kt % NST
        is_last = kt == KT - 1
        nks = last_nks if is_last else 4
        if amode == 'frag' and kt + PF < KT: enqueue(aload(kt + PF), f"a{kt+PF}")
        if auxg and kt >= 2:
            nleft = max(1, KT - 2 - kt)
            for _ in range(-(-len(auxg) // nleft)): vq.append((auxg.pop(0), "aux"))
        for ks in range(nks):
            buf = ks & 1
            mf = []
            for mb in range(MB):
                for nb in range(NBk):
                    bop = vr(fa(buf, mb), 4) if amode == 'lds' else ar(xf(kt, mb, ks), 4)
                    mf.append(f"v_mfma_f32_32x32x16_bf16 {vr(acc(mb,nb),16)}, {vr(fb(buf,nb),4)}, {bop}, {vr(acc(mb,nb),16)}")
            pre = ["s_waitcnt lgkmcnt(0)"]
            rd = []
            if ks < nks - 1:
                rd = reads(1 - buf, stage, ks + 1)
                phases_left = 3 - ks
            elif not is_last:
                assert not vq
                pre = [f"s_waitcnt vmcnt({vmwait(f'a{kt+1}', f'd{kt+1}')}) lgkmcnt(0)", "s_barrier"]
                rd = reads(0, (kt + 1) % NST, 0)
                if kt + NST < KT: enqueue(dma(stage), f"d{kt+NST}")
                phases_left = 4
            else:
                phases_left = 1
            ng = len(mf)
            take = -(-len(vq) // phases_left) if vq else 0
            take = min(take, len(vq))
            grp = [vq.pop(0) for _ in range(take)]
            gaps = [[] for _ in range(ng)]
            per_gap = max(2, -(-len(rd) // max(1, ng // 2)))
            for i, r in enumerate(rd): gaps[min(i // per_gap, ng - 1)].append(r)
            load = [len(g_) for g_ in gaps]
            pos = []
            for _ in range(take):
                gi_ = min(range(ng), key=lambda q: (load[q], -q))
                load[gi_] += 4
                pos.append(gi_)
            pos.sort()
            a.many(pre)
            gi_groups = {}
            for p_, gr in zip(pos, grp): gi_groups.setdefault(min(p_, ng - 1), []).append(gr)
            for gi in range(ng):
                e(mf[gi]); a.many(gaps[gi])
                for (ins_list, tag) in gi_groups.get(gi, []):
                    for k_, ins in enumerate(ins_list):
                        if ins.startswith("buffer_"):
                            seq.append(tag)
                            if k_ > 0 and "m0" in ins_list[k_-1] and ins.endswith("lds"): e("s_nop 0")
                        e(ins)
    per = NST if amode == 'lds' else (NST * NPF // math.gcd(NST, NPF))
    lookahead = max(NST, PF)
    G_ = (KT - lookahead) // per if KT > 16 else 0
    if G_ >= 2:
        marks = len(a.lines)
        e(f"s_mov_b32 s{sIT}, 0")
        a.raw(".p2align 6")
        a.label(f"{name}_loop")
        l0 = len(a.lines)
        for kt in range(per): tile_code(kt)
        body1 = a.lines[l0:]
        sv = len(a.lines)
        for kt in range(per, 2 * per): tile_code(kt)
        body2 = a.lines[sv:]
        del a.lines[sv:]
        if body1 != body2:
            del a.lines[marks:]
            for l in body1: a.lines.append(l)
            e(f"s_mov_b32 s{sIT}, 1")
            a.raw(".p2align 6")
            a.label(f"{name}_loop")
            for l in body2: a.lines.append(l)
            sv2 = len(a.lines)
            for kt in range(2 * per, 3 * per): tile_code(kt)
            assert a.lines[sv2:] == body2, "not steady"
            del a.lines[sv2:]
            done = 3
        else:
            done = 2
        e(f"s_add_u32 s{sIT}, s{sIT}, 1")
        e(f"s_cmp_lt_u32 s{sIT}, {G_}")
        e(f"s_cbranch_scc1 {name}_loop")
        sv = len(a.lines)
        for kt in range(done * per, G_ * per): tile_code(kt)
        del a.lines[sv:]
        start = G_ * per
        assert G_ >= done
    else:
        start = 0
    for kt in range(start, KT): tile_code(kt)
    stamp(a, 2)
    e("s_nop 15")
    e(f"s_mov_b32 s{sBK}, 0xffff0000")
    kind = epi
    def rnd(dst0, dst1, a0, a1, tmp):
        return [f"v_cvt_pk_bf16_f32 v{tmp}, v{a0}, v{a1}", f"v_lshlrev_b32 v{dst0}, 16, v{tmp}", f"v_and_b32 v{dst1}, s{sBK}, v{tmp}"]
    if kind == 'gelu':
        e(f"s_mov_b32 s{sC2}, {f32hex(0.044715)}")
        e(f"s_mov_b32 s{sAK}, {f32hex(-2.0 * math.sqrt(2.0 / math.pi) * LOG2E)}")
    if kind == 'final':
        e(f"s_mov_b32 s{sC2}, {f32hex(-LOG2E)}")
    if kind in ('sp', 'final'):
        e("s_waitcnt vmcnt(0)")
    if epi != 'final':
        e("s_lshr_b32 s46, s2, 3")
        e(f"s_mul_i32 s46, s46, {NW}")
        e(f"s_add_u32 s46, s46, s{sW}")
        code_prefetch(a, 48, 1, 40, 46)
        if epi == 'gelu' and OPT.get('wq_in_win'):
            e("s_load_dwordx2 s[52:53], s[0:1], 24")
            e(f"s_mul_i32 s46, s2, {NW}")
            e(f"s_add_u32 s46, s46, s{sW}")
            e("s_lshl_b32 s46, s46, 10")
            e("v_lshl_add_u32 v1, v2, 4, s46")
            e("s_waitcnt lgkmcnt(0)")
            e(f"s_mov_b32 s54, {640*4096*2}"); e("s_mov_b32 s55, 0x20000")
            for i in range(3):
                e(f"s_mov_b32 s46, {i*1792*1024}")
                e("buffer_load_dwordx4 v[40:43], v1, s[52:55], s46 offen")
    for mb in range(MB):
        if kind == 'sp': e(f"v_lshlrev_b32 v7, 16, v{auxb(mb)}")
        for nb in range(NBk):
            skip = None
            if N % Nt:
                skip = a.newlabel(name + "_skip")
                e(f"s_add_u32 s{sT}, s{sNW}, {nb*32}")
                e(f"s_cmp_ge_u32 s{sT}, {N}")
                e(f"s_cbranch_scc1 {skip}")
            A0 = acc(mb, nb)
            if kind == 'part':
                blk_off(20, mb, nb, 5, 1, sT)
                e(f"s_lshl_b32 s{sT}, s{sT}, 11")
                e(f"s_add_u32 s{sT}, s{sT}, s{sC1}")
                for p_ in range(8): e(f"v_cvt_pk_bf16_f32 v{A0+p_}, v{A0+2*p_}, v{A0+2*p_+1}")
                for gq in range(2):
                    e(f"buffer_store_dwordx4 {vr(A0+4*gq,4)}, v{VA}, {sr(sC,4)}, s{sT} offen offset:{gq*1024}")
                if skip: a.label(skip)
                continue
            for pp in range(4):
                prs = [(A0 + 4 * pp, T0), (A0 + 4 * pp + 2, T0 + 4)]
                xs = [(A0 + 4 * pp + i, T0 + 8 + i) for i in range(4)]
                if kind in ('gelu', 'sp', 'final'):
                    for (a0, tt) in prs: a.many(rnd(a0, a0 + 1, a0, a0 + 1, tt))
                if kind == 'gelu':
                    for (x, t) in xs: e(f"v_mul_f32 v{t}, v{x}, v{x}")
                    for (x, t) in xs: e(f"v_fma_f32 v{t}, v{t}, s{sC2}, 1.0")
                    for (x, t) in xs: e(f"v_mul_f32 v{t}, v{t}, v{x}")
                    for (x, t) in xs: e(f"v_mul_f32 v{t}, s{sAK}, v{t}")
                    for (x, t) in xs: e(f"v_exp_f32 v{t}, v{t}")
                    for (x, t) in xs: e(f"v_add_f32 v{t}, 1.0, v{t}")
                    for (x, t) in xs: e(f"v_rcp_f32 v{t}, v{t}")
                    for (x, t) in xs: e(f"v_mul_f32 v{x}, v{x}, v{t}")
                elif kind == 'sp':
                    for (x, t) in xs: e(f"v_add_f32 v{x}, v{x}, v7")
                elif kind == 'final':
                    for (x, t) in xs: e(f"v_mul_f32 v{t}, s{sC2}, v{x}")
                    for (x, t) in xs: e(f"v_exp_f32 v{t}, v{t}")
                    P0 = T0 + 12
                    for sp in range(nsplit):
                        for h in range(2):
                            src = auxp(mb, nb, sp) + 2 * pp + h
                            if sp == 0:
                                e(f"v_lshlrev_b32 v{P0+2*h}, 16, v{src}"); e(f"v_and_b32 v{P0+2*h+1}, s{sBK}, v{src}")
                            else:
                                e(f"v_lshlrev_b32 v{T0+16+2*h}, 16, v{src}"); e(f"v_and_b32 v{T0+17+2*h}, s{sBK}, v{src}")
                        if sp:
                            for i in range(4): e(f"v_add_f32 v{P0+i}, v{P0+i}, v{T0+16+i}")
                    for (x, t) in xs: e(f"v_add_f32 v{t}, 1.0, v{t}")
                    for (x, t) in xs: e(f"v_rcp_f32 v{t}, v{t}")
                    for h in range(2): a.many(rnd(P0 + 2 * h, P0 + 2 * h + 1, P0 + 2 * h, P0 + 2 * h + 1, T0 + 4 * h))
                    for (x, t) in xs: e(f"v_mul_f32 v{x}, v{x}, v{t}")
                    for (a0, tt) in prs: a.many(rnd(a0, a0 + 1, a0, a0 + 1, tt))
                    for i, (x, t) in enumerate(xs): e(f"v_mul_f32 v{x}, v{x}, v{P0+i}")
                for h in range(2):
                    e(f"v_cvt_pk_bf16_f32 v{A0+2*pp+h}, v{A0+4*pp+2*h}, v{A0+4*pp+2*h+1}")
            e("s_nop 1")
            for gp in range(2):
                t = A0 + 4 * gp
                e(f"v_permlane32_swap_b32 v{t}, v{t+2}")
                e(f"v_permlane32_swap_b32 v{t+1}, v{t+3}")
            e("s_nop 1")
            if kind in ('sp', 'final'):
                XB = auxz(mb, nb) if kind == 'sp' else auxx(mb, nb)
                op = "v_mul_f32" if kind == 'sp' else "v_add_f32"
                for p2 in range(4):
                    for h in range(2):
                        d = A0 + 2 * p2 + h; tt = T0 + 4 * h
                        e(f"v_lshlrev_b32 v{tt}, 16, v{d}"); e(f"v_and_b32 v{tt+1}, s{sBK}, v{d}")
                        e(f"v_lshlrev_b32 v{tt+2}, 16, v{XB+2*p2+h}"); e(f"v_and_b32 v{tt+3}, s{sBK}, v{XB+2*p2+h}")
                    for h in range(2):
                        tt = T0 + 4 * h
                        e(f"{op} v{tt}, v{tt}, v{tt+2}"); e(f"{op} v{tt+1}, v{tt+1}, v{tt+3}")
                    for h in range(2):
                        e(f"v_cvt_pk_bf16_f32 v{A0+2*p2+h}, v{T0+4*h}, v{T0+4*h+1}")
            if kind == 'final':
                e(f"s_mov_b32 s{sT}, {mb*32*ldc*2}")
                for gp in range(2):
                    e(f"buffer_store_dwordx4 {vr(A0+4*gp,4)}, v{VC}, {sr(sC,4)}, s{sT} offen offset:{nb*64+gp*32}")
            else:
                blk_off(108 if kind == 'gelu' else 54, mb, nb, 4, 2, sT)
                e(f"s_lshl_b32 s{sT}, s{sT}, 10")
                for gp in range(2):
                    e(f"buffer_store_dwordx4 {vr(A0+4*gp,4)}, v{VA}, {sr(sC,4)}, s{sT} offen offset:{gp*1024}")
            if skip: a.label(skip)
    stamp(a, 3)
    stamp_out(a, name)
    return NV, NA, lds

def load_srds(a, specs):
    for (d, (kind, val), nb) in specs:
        a.e(f"s_load_dwordx2 s[{d}:{d+1}], s[0:1], {val*8 if kind == 'in' else 96}")
    a.e("v_lshrrev_b32 v1, 6, v0")
    a.e("v_and_b32 v2, 63, v0")
    a.e("s_nop 0")
    a.e(f"v_readfirstlane_b32 s{G.sW}, v1")
    a.e("s_waitcnt lgkmcnt(0)")
    for (d, (kind, val), nb) in specs:
        if kind == 'ws' and val:
            a.e(f"s_add_u32 s{d}, s{d}, {val}")
            a.e(f"s_addc_u32 s{d+1}, s{d+1}, 0")
        a.e(f"s_mov_b32 s{d+2}, {nb}")
        a.e(f"s_mov_b32 s{d+3}, 0x20000")

XNB = 2048 * 640 * 2; ZB = 2048 * 1728 * 2; Z2B = 2048 * 864 * 2

def simple_tile_ids(a, MT, Mt, Nt):
    MPX = MT // 8
    lg = MPX.bit_length() - 1
    e = a.e
    e(f"s_and_b32 s{G.sM}, s2, 7")
    e(f"s_lshl_b32 s{G.sM}, s{G.sM}, {lg}")
    e(f"s_lshr_b32 s{G.sT}, s2, 3")
    e(f"s_and_b32 s{G.sN}, s{G.sT}, {MPX-1}")
    e(f"s_add_u32 s{G.sM}, s{G.sM}, s{G.sN}")
    e(f"s_lshr_b32 s{G.sN}, s{G.sT}, {lg}")
    e(f"s_mul_i32 s{G.sM}, s{G.sM}, {Mt}")
    e(f"s_mul_i32 s{G.sN}, s{G.sN}, {Nt}")
    e(f"s_mov_b32 s{G.sK0}, 0")

def gen_win(a, Mt=128, Nt=128, WM=4, WN=2, NST=4, PF=3):
    name = "win_kernel"
    MT = 2048 // Mt; NT = (1728 + Nt - 1) // Nt
    kernel_header(a, name)
    a.e(f"s_cmp_ge_u32 s2, {MT*NT}"); a.e(f"s_cbranch_scc1 {name}_done")
    load_srds(a, [(G.sA, ('ws', WS_XN), XNB), (G.sB, ('in', 6), 640*1728*2), (G.sC, ('ws', WS_Z), ZB)])
    simple_tile_ids(a, MT, Mt, Nt)
    NV, NA, lds = gemm_body(a, name, 1728, 640, 10, 4, None, 1728, 'gelu', Mt, Nt, WM, WN, NST, 'frag', PF=PF, ksteps_A=40)
    a.label(f"{name}_done"); a.e("s_endpgm")
    return name, kernel_desc(name, NV, NA, 90), (MT * NT, WM * WN * 64, lds)

def gen_fin(a, Mt=128, Nt=64, WM=4, WN=1, NST=6, PF=4, nsplit=3):
    name = "fin_kernel"
    MT = 2048 // Mt; NT = 640 // Nt
    kernel_header(a, name)
    a.e(f"s_cmp_ge_u32 s2, {MT*NT}"); a.e(f"s_cbranch_scc1 {name}_done")
    load_srds(a, [(G.sA, ('ws', WS_T), Z2B), (G.sB, ('in', 9), 864*640*2), (G.sC, ('in', 10), XNB),
                  (G.sX1, ('ws', WS_S), nsplit * 2048 * 640 * 2), (G.sX2, ('in', 0), XNB)])
    simple_tile_ids(a, MT, Mt, Nt)
    NV, NA, lds = gemm_body(a, name, 640, 864, 14, 2, None, 640, 'final', Mt, Nt, WM, WN, NST, 'frag', PF=PF, ksteps_A=54, ldc=640, nsplit=nsplit)
    a.label(f"{name}_done"); a.e("s_endpgm")
    return name, kernel_desc(name, NV, NA, 90), (MT * NT, WM * WN * 64, lds)

def gen_spwo(a, NST_SP=4, NST_WO=4, PF=3):
    name = "spwo_kernel"
    e = a.e
    kernel_header(a, name)
    e("s_cmp_ge_u32 s2, 248"); e(f"s_cbranch_scc1 {name}_done")
    e("s_lshr_b32 s40, s2, 3")
    e("s_and_b32 s41, s2, 7")
    e("s_cmp_lt_u32 s40, 15"); e(f"s_cbranch_scc1 {name}_wo")
    e("s_sub_u32 s40, s40, 15")
    e("s_and_b32 s42, s41, 1")
    e("s_lshl_b32 s43, s42, 2")
    e("s_sub_u32 s44, 16, s43")
    e("s_cmp_ge_u32 s40, s44"); e(f"s_cbranch_scc1 {name}_done")
    load_srds(a, [(G.sA, ('in', 7), 2048*2048*2), (G.sB, ('ws', WS_Z2N), Z2B), (G.sC, ('ws', WS_T), Z2B),
                  (G.sX1, ('ws', WS_Z), ZB), (G.sX2, ('in', 8), 4096)])
    e(f"s_lshr_b32 s{G.sM}, s41, 1")
    e(f"s_lshl_b32 s{G.sM}, s{G.sM}, 2")
    e(f"s_and_b32 s{G.sT}, s40, 3")
    e(f"s_add_u32 s{G.sM}, s{G.sM}, s{G.sT}")
    e(f"s_lshl_b32 s{G.sM}, s{G.sM}, 7")
    e(f"s_lshr_b32 s{G.sN}, s40, 2")
    e(f"s_add_u32 s{G.sN}, s{G.sN}, s43")
    e(f"s_lshl_b32 s{G.sN}, s{G.sN}, 7")
    e(f"s_mov_b32 s{G.sK0}, 0")
    NV1, NA1, lds1 = gemm_body(a, name + "_sp", 864, 2048, 32, 4, 2048, 864, 'sp', 128, 128, 2, 2, NST_SP, 'lds')
    e("s_endpgm")
    a.label(f"{name}_wo")
    load_srds(a, [(G.sA, ('ws', WS_O), 16 << 20), (G.sB, ('in', 4), 4096*640*2), (G.sC, ('ws', WS_S), 3 * 2048 * 640 * 2)])
    e("s_mul_i32 s42, s40, 13")
    e("s_lshr_b32 s42, s42, 6")
    e("s_mul_i32 s43, s42, 5")
    e("s_sub_u32 s43, s40, s43")
    e("s_mul_i32 s45, s41, 3")
    e("s_add_u32 s45, s45, s42")
    e("s_lshr_b32 s42, s45, 3")
    e("s_and_b32 s45, s45, 7")
    e(f"s_lshl_b32 s{G.sM}, s45, 8")
    e(f"s_lshl_b32 s{G.sN}, s43, 7")
    e(f"s_mul_i32 s{G.sK0}, s42, 22")
    e(f"s_mul_i32 s44, s42, {2048*640*2}")
    mark = len(a.lines)
    NV2, NA2, lds2 = gemm_body(a, name + "_wo", 640, 4096, 22, 4, None, 640, 'part', 256, 128, 4, 1, NST_WO, 'frag', PF=PF, ksteps_A=256)
    for i in range(len(a.lines) - 1, mark, -1):
        if a.lines[i].strip() == "s_nop 15":
            a.lines.insert(i + 1, f"    s_mov_b32 s{G.sC1}, s44")
            break
    a.label(f"{name}_done"); e("s_endpgm")
    return name, kernel_desc(name, max(NV1, NV2), max(NA1, NA2), 90), (248, 256, max(lds1, lds2))
```
